```python
import torch

def _softmax(x, axis=-1):
    return torch.softmax(x, dim=axis)
def _gelu(x):
    return torch.nn.functional.gelu(x, approximate="tanh")
def _silu(x):
    return torch.nn.functional.silu(x)
def _sigmoid(x):
    return torch.sigmoid(x)
def _layernorm(x, axis=-1, eps=1e-5):
    m = x.mean(dim=axis, keepdim=True)
    v = x.var(dim=axis, keepdim=True, unbiased=False)
    return (x - m) / torch.sqrt(v + eps)
def _scatter_add(tgt, idx, src, axis=0):
    return tgt.clone().index_add_(axis, idx, src)
def _segment_sum(src, seg, n):
    out = torch.zeros((n,) + src.shape[1:], dtype=src.dtype)
    return out.index_add_(0, seg, src)
def _pad(x, pw):
    flat = tuple(v for pair in reversed(pw) for v in pair)
    return torch.nn.functional.pad(x, flat)

kernel_name = 'recurrent_scan__sliding_block_cached__swiglu_ffn__decode'

def setup_inputs():

    _w = (lambda a: (lambda t: t.to(torch.bfloat16) if t.is_floating_point() else t)(torch.as_tensor(a)))
    def _A_setup():
        B, Sq, D = 1, 1, 576
        Hq, Hkv, Sk, Dh = 32, 16, 8192, 128
        assert Hq % Hkv == 0, (Hq, Hkv)
        return {
            "x": _w((lambda *s: torch.randn(*s, dtype=torch.bfloat16) * 0.05)(B, Sq, D)),
            "k_cache": _w((lambda *s: torch.randn(*s, dtype=torch.bfloat16) * 0.8)(B, Hkv, Sk, Dh)),
            "v_cache": _w((lambda *s: torch.randn(*s, dtype=torch.bfloat16) * 0.2)(B, Hkv, Sk, Dh)),
            "wq": _w((lambda *s: torch.randn(*s, dtype=torch.bfloat16) * 0.8)(D, Hq * Dh) * (D ** -0.5)),
            "wo": _w((lambda *s: torch.randn(*s, dtype=torch.bfloat16) * 0.2)(Hq * Dh, D) * ((Hq * Dh) ** -0.5)),
        }
    _A_in = _A_setup()

    def _B_setup():
        B, S, D, F = 1, 1, 576, 4608
        return {
            "x": _w((lambda *s: torch.randn(*s, dtype=torch.bfloat16) * 0.05)(B, S, D)),
            "w_gate": _w((lambda *s: torch.randn(*s, dtype=torch.bfloat16) * 0.1)(D, F)),
            "w_up": _w((lambda *s: torch.randn(*s, dtype=torch.bfloat16) * 0.1)(D, F)),
            "w_down": _w((lambda *s: torch.randn(*s, dtype=torch.bfloat16) * 0.1)(F, D)),
        }
    _B_in = _B_setup()

    return {
        "A_x": _A_in["x"],
        "A_k_cache": _A_in["k_cache"],
        "A_v_cache": _A_in["v_cache"],
        "A_wq": _A_in["wq"],
        "A_wo": _A_in["wo"],
        "B_x": _B_in["x"],
        "B_w_gate": _B_in["w_gate"],
        "B_w_up": _B_in["w_up"],
        "B_w_down": _B_in["w_down"],
    }

def reference(A_x, A_k_cache, A_v_cache, A_wq, A_wo, B_x, B_w_gate, B_w_up, B_w_down):
    def _A_ref(x, k_cache, v_cache, wq, wo):
        B, Sq, D = x.shape
        Hq, Dh = 32, 128
        Hkv, Sk = k_cache.shape[1], k_cache.shape[2]
        W = min(4096, max(256, Sk // 4))
        rep = Hq // Hkv
        q = (lambda x, *d: x.permute(*d))((x @ wq).reshape(B, Sq, Hq, Dh), 0, 2, 1, 3)
        k = (lambda x, n, axis: torch.repeat_interleave(x, n, dim=axis))(k_cache[:, :, Sk - W:, :], rep, axis=1)
        v = (lambda x, n, axis: torch.repeat_interleave(x, n, dim=axis))(v_cache[:, :, Sk - W:, :], rep, axis=1)
        scores = torch.einsum("bhqd,bhkd->bhqk", q, k) * (Dh ** -0.5)
        p = _softmax(scores, axis=-1)
        o = torch.einsum("bhqk,bhkd->bhqd", p, v)
        return (lambda x, *d: x.permute(*d))(o, 0, 2, 1, 3).reshape(B, Sq, Hq * Dh) @ wo

    def _B_ref(x, w_gate, w_up, w_down):
        g = _silu(x @ w_gate)
        u = x @ w_up
        return (g * u) @ w_down

    x = A_x
    xn = _layernorm(x, axis=-1)
    s = _A_ref(xn, A_k_cache, A_v_cache, A_wq, A_wo)
    g = _silu(_B_ref(xn, B_w_gate, B_w_up, B_w_down))
    return x + s * g
```

```python
import re

TRANS = ("v_exp_f32", "v_log_f32", "v_rcp_f32", "v_rsq_f32", "v_sqrt_f32", "v_sin_f32", "v_cos_f32",
         "v_rcp_iflag_f32")
MFMA_PASSES = {
    "v_mfma_f32_16x16x32_bf16": 4,
    "v_mfma_f32_32x32x16_bf16": 8,
    "v_mfma_f32_16x16x16_bf16": 4,
    "v_mfma_f32_32x32x8_bf16": 8,
}
MFMA_RAW = {2: 5, 4: 8, 8: 12, 16: 20}
MFMA_WAR_C = {2: 1, 4: 3, 8: 7, 16: 15}


def split_top(s):
    out, depth, cur = [], 0, ""
    for ch in s:
        if ch in "[(":
            depth += 1
        elif ch in "])":
            depth -= 1
        if ch == "," and depth == 0:
            out.append(cur.strip())
            cur = ""
        else:
            cur += ch
    if cur.strip():
        out.append(cur.strip())
    return out


REG_RE = re.compile(r"^(-?)(\|?)(?:abs\(|neg\()?([vsa])(?:(\d+)|\[(\d+):(\d+)\])\)?\|?$")


def parse_reg(tok):
    t = tok.strip()
    if t in ("vcc", "exec", "m0", "scc"):
        return [(t, 0)]
    if t in ("vcc_lo", "vcc_hi"):
        return [("vcc", 0)]
    if t in ("exec_lo", "exec_hi"):
        return [("exec", 0)]
    m = REG_RE.match(t)
    if not m:
        return []
    f = m.group(3)
    if m.group(4) is not None:
        return [(f, int(m.group(4)))]
    return [(f, i) for i in range(int(m.group(5)), int(m.group(6)) + 1)]


class Ins:
    def __init__(self, text):
        self.text = text
        t = text.split(";")[0].strip()
        self.is_label = t.endswith(":")
        self.is_dir = t.startswith(".")
        self.empty = (t == "")
        self.reads, self.writes = [], []
        self.mn = ""
        self.ops = []
        self.mods = ""
        if self.is_label or self.is_dir or self.empty:
            return
        parts = t.split(None, 1)
        self.mn = parts[0]
        rest = parts[1] if len(parts) > 1 else ""
        toks = split_top(rest)
        ops = []
        for i, tk in enumerate(toks):
            pieces = tk.split()
            ops.append(pieces[0])
            if len(pieces) > 1:
                self.mods += " " + " ".join(pieces[1:])
        self.ops = ops
        self.classify()

    def classify(self):
        mn, ops = self.mn, self.ops
        R = lambda i: parse_reg(ops[i]) if i < len(ops) else []
        self.valu = mn.startswith("v_")
        self.mfma = mn in MFMA_PASSES
        if mn.startswith("v_mfma") and not self.mfma:
            raise ValueError("unknown mfma " + mn)
        self.trans = mn in TRANS or mn.replace("_e32", "").replace("_e64", "") in TRANS
        self.dpp = mn.endswith("_dpp")
        self.vmem = mn.split("_")[0] in ("buffer", "global", "flat", "scratch")
        self.ds = mn.startswith("ds_")
        self.smem = mn.startswith("s_load") or mn.startswith("s_buffer_load") or mn in ("s_memtime", "s_memrealtime")
        self.salu = mn.startswith("s_") and not self.smem
        self.branch = mn.startswith("s_cbranch") or mn in ("s_branch", "s_setpc_b64", "s_swappc_b64")
        self.nop = 0
        if mn == "s_nop":
            self.nop = int(ops[0], 0) + 1
        rd, wr = [], []
        base = mn.replace("_e32", "").replace("_e64", "").replace("_dpp", "")
        if self.valu:
            if base.startswith("v_cmpx"):
                raise ValueError("avoid v_cmpx")
            if base.startswith("v_cmp"):
                wr += R(0)
                for i in range(1, len(ops)):
                    rd += R(i)
            elif base in ("v_readlane_b32", "v_readfirstlane_b32"):
                wr += R(0)
                rd += R(1)
                self.lanesel = R(2)
                rd += self.lanesel
            elif base == "v_writelane_b32":
                wr += R(0)
                rd += R(0) + R(1) + R(2)
                self.lanesel = R(2)
            elif base.startswith("v_permlane") and base.endswith("swap_b32"):
                wr += R(0) + R(1)
                rd += R(0) + R(1)
            elif base in ("v_add_co_u32", "v_sub_co_u32", "v_subrev_co_u32"):
                wr += R(0) + R(1)
                rd += R(2) + R(3)
            elif base in ("v_addc_co_u32", "v_subb_co_u32", "v_subbrev_co_u32"):
                wr += R(0) + R(1)
                rd += R(2) + R(3) + R(4)
            elif base in ("v_fmac_f32", "v_dot2c_f32_bf16", "v_mac_f32", "v_fmaak_f32", "v_fmamk_f32", "v_pk_fmac_f16"):
                wr += R(0)
                if base in ("v_fmac_f32", "v_dot2c_f32_bf16", "v_mac_f32", "v_pk_fmac_f16"):
                    rd += R(0)
                for i in range(1, len(ops)):
                    rd += R(i)
            elif base == "v_nop":
                pass
            else:
                wr += R(0)
                for i in range(1, len(ops)):
                    rd += R(i)
                if base == "v_cndmask_b32" and len(ops) == 3:
                    rd += [("vcc", 0)]
            if self.dpp:
                pass
        elif self.ds:
            b = mn
            if b.startswith("ds_read") or b.startswith("ds_bpermute") or b.startswith("ds_permute") or b.startswith("ds_swizzle"):
                wr += R(0)
                for i in range(1, len(ops)):
                    rd += R(i)
            elif b.startswith("ds_write") or b.startswith("ds_add") or b.startswith("ds_max") or b.startswith("ds_min") or b.startswith("ds_or"):
                if "rtn" in b:
                    wr += R(0)
                    for i in range(1, len(ops)):
                        rd += R(i)
                else:
                    for i in range(len(ops)):
                        rd += R(i)
            else:
                raise ValueError("ds op? " + mn)
        elif self.vmem:
            lds = " lds" in (" " + self.mods + " ")
            if mn in ("buffer_wbl2", "buffer_inv"):
                pass
            elif "_load" in mn:
                if lds or "_lds" in mn:
                    for i in range(len(ops)):
                        rd += R(i)
                else:
                    wr += R(0)
                    for i in range(1, len(ops)):
                        rd += R(i)
            elif "_store" in mn:
                for i in range(len(ops)):
                    rd += R(i)
            elif "_atomic" in mn:
                ret = " sc0" in (" " + self.mods + " ")
                for i in range(len(ops)):
                    rd += R(i)
                if ret:
                    wr += R(0)
            else:
                raise ValueError("vmem op? " + mn)
        elif self.smem:
            wr += R(0)
            for i in range(1, len(ops)):
                rd += R(i)
        elif self.salu:
            if self.branch or mn in ("s_nop", "s_waitcnt", "s_barrier", "s_endpgm", "s_sleep", "s_setprio", "s_sethalt"):
                pass
            elif mn.startswith("s_cmp") or mn.startswith("s_bitcmp"):
                for i in range(len(ops)):
                    rd += R(i)
            elif mn == "s_setreg_b32":
                rd += R(1)
            else:
                wr += R(0)
                for i in range(1, len(ops)):
                    rd += R(i)
                if "saveexec" in mn:
                    wr += [("exec", 0)]
                    rd += [("exec", 0)]
        else:
            raise ValueError("unknown instruction: " + self.text)
        self.reads, self.writes = rd, wr


def pad_hazards(lines):
    out = []
    pos = 0
    vw = {}
    sw = {}
    srcC = {}
    stdata = {}
    m0w = [-100]
    execw = [-100]

    def need_for(ins):
        need = 0
        def req(p, n):
            nonlocal need
            need = max(need, p + n + 1)
        for r in ins.reads:
            if r[0] in ("v", "a"):
                w = vw.get(r)
                if w is None:
                    continue
                p, kind, passes = w[0], w[1], w[2]
                if kind in ("valu", "trans"):
                    if ins.valu:
                        if ins.dpp:
                            req(p, 2)
                        if ins.mn.startswith("v_readlane") or ins.mn.startswith("v_readfirstlane"):
                            req(p, 1)
                        if ins.mn.startswith("v_permlane"):
                            req(p, 2)
                        if ins.mfma:
                            req(p, 2)
                        if kind == "trans" and not ins.mfma:
                            req(p, 1)
                elif kind == "mfma":
                    if ins.mfma:
                        c = parse_reg(ins.ops[3]) if len(ins.ops) > 3 else []
                        d = parse_reg(ins.ops[0])
                        if r in c and c == w[3] and MFMA_PASSES[ins.mn] == passes and r not in parse_reg(ins.ops[1]) and r not in parse_reg(ins.ops[2]):
                            req(p, 2 if passes == 2 else 0)
                        else:
                            req(p, MFMA_RAW[passes])
                    else:
                        req(p, MFMA_RAW[passes])
            elif r[0] in ("s", "vcc"):
                p = sw.get(r)
                if p is None:
                    continue
                if ins.valu:
                    if r in getattr(ins, "lanesel", []):
                        req(p, 4)
                    else:
                        req(p, 2)
                elif ins.vmem:
                    req(p, 5)
            elif r[0] == "m0":
                if (ins.vmem and ("lds" in ins.mn or " lds" in " " + ins.mods)) or ins.mn == "s_sendmsg":
                    req(m0w[0], 1)
        if ins.vmem and ("_lds" in ins.mn or " lds" in (" " + ins.mods + " ")):
            req(m0w[0], 1)
        for r in ins.writes:
            if r[0] in ("v", "a"):
                w = vw.get(r)
                if w is not None and w[1] == "mfma":
                    if ins.mfma:
                        d = parse_reg(ins.ops[0])
                        if d == w[3] and MFMA_PASSES[ins.mn] == w[2]:
                            req(w[0], 0)
                        else:
                            req(w[0], MFMA_RAW[w[2]])
                    else:
                        req(w[0], MFMA_RAW[w[2]])
                c = srcC.get(r)
                if c is not None and ins.valu and not ins.mfma:
                    req(c[0], MFMA_WAR_C[c[1]])
                s = stdata.get(r)
                if s is not None:
                    req(s, 2 if ins.valu else 1)
        return need

    def flush_need():
        need = 0
        for r, w in vw.items():
            if w[1] in ("valu", "trans"):
                need = max(need, w[0] + 2 + 1)
            elif w[1] == "mfma":
                need = max(need, w[0] + MFMA_RAW[w[2]] + 1)
        for r, p in sw.items():
            need = max(need, p + 5 + 1)
        for r, c in srcC.items():
            need = max(need, c[0] + MFMA_WAR_C[c[1]] + 1)
        for r, s in stdata.items():
            need = max(need, s + 2 + 1)
        need = max(need, m0w[0] + 2)
        return need

    def emit_nops(n):
        nonlocal pos
        while n > 0:
            k = min(n, 16)
            out.append("  s_nop %d" % (k - 1))
            pos += k
            n -= k

    for line in lines:
        ins = Ins(line)
        if ins.is_label or ins.is_dir or ins.empty:
            out.append(line)
            continue
        need = need_for(ins)
        if ins.branch:
            need = max(need, flush_need())
        if need > pos:
            emit_nops(need - pos)
        out.append(line)
        p = pos
        for r in ins.writes:
            if r[0] in ("v", "a"):
                if ins.mfma:
                    vw[r] = (p, "mfma", MFMA_PASSES[ins.mn], parse_reg(ins.ops[0]))
                elif ins.valu:
                    vw[r] = (p, "trans" if ins.trans else "valu", 0)
                else:
                    vw[r] = (p, "mem", 0)
            elif r[0] in ("s", "vcc"):
                if ins.valu:
                    sw[r] = p
                else:
                    sw.pop(r, None)
            elif r[0] == "m0":
                m0w[0] = p
        if ins.mfma and len(ins.ops) > 3:
            for r in parse_reg(ins.ops[3]):
                srcC[r] = (p, MFMA_PASSES[ins.mn])
        if ins.vmem and re.search(r"store_dwordx[34]|atomic_cmpswap_x2", ins.mn):
            for r in ins.reads:
                if r[0] in ("v", "a"):
                    stdata[r] = p
        pos += ins.nop if ins.nop else 1
        if len(vw) > 600:
            pass
        for d, lim in ((sw, 8), (stdata, 4)):
            for r in [r for r, q in d.items() if pos - q > lim]:
                del d[r]
        for r in [r for r, c in srcC.items() if pos - c[0] > 20]:
            del srcC[r]
        for r in [r for r, w in vw.items() if pos - w[0] > 24]:
            del vw[r]
    return out


class Emitter:
    def __init__(self):
        self.lines = []

    def __call__(self, s):
        for ln in s.strip("\n").split("\n"):
            ln = ln.strip()
            if not ln:
                continue
            if ln.endswith(":") or ln.startswith("."):
                self.lines.append(ln)
            elif ln.startswith(";"):
                self.lines.append("  " + ln)
            else:
                self.lines.append("  " + ln)

    def label(self, name):
        self.lines.append(name + ":")

    def text(self):
        return "\n".join(pad_hazards(self.lines)) + "\n"
```

```python
from asmgen import Emitter

HEADER = """; Kernarg layout for this problem (96 bytes, ptrs only, base s[0:1]):
"""

KA_X, KA_K, KA_V, KA_WQ, KA_WO, KA_BX, KA_WG, KA_WU, KA_WD, KA_OUT, KA_DBG, KA_WS = [8 * i for i in range(12)]

C_INV576 = "0x3ae38e39"
C_EPS = "0x3727c5ac"
C_SCALE = "0x3db504f3"
C_LOG2E = "0x3fb8aa3b"


def srd(e, d, base, nbytes):
    e(f"s_mov_b32 s{d}, s{base}")
    e(f"s_mov_b32 s{d+1}, s{base+1}")
    e(f"s_mov_b32 s{d+2}, {nbytes}")
    e(f"s_mov_b32 s{d+3}, 0x20000")


def wave_reduce_add(e, v):
    for sh in (1, 2, 4, 8):
        e(f"v_add_f32_dpp v{v}, v{v}, v{v} row_shr:{sh} row_mask:0xf bank_mask:0xf bound_ctrl:0")
    e(f"v_add_f32_dpp v{v}, v{v}, v{v} row_bcast:15 row_mask:0xa bank_mask:0xf")
    e(f"v_add_f32_dpp v{v}, v{v}, v{v} row_bcast:31 row_mask:0xc bank_mask:0xf")


def row_allreduce(e, op, v):
    for sh in (8, 4, 2, 1):
        e(f"{op}_dpp v{v}, v{v}, v{v} row_ror:{sh} row_mask:0xf bank_mask:0xf")


def rb(e, v, t):
    e(f"v_cvt_pk_bf16_f32 v{t}, v{v}, v{v}")
    e(f"v_lshlrev_b32 v{v}, 16, v{t}")


def rb2(e, a, b, t, smask):
    e(f"v_cvt_pk_bf16_f32 v{t}, v{a}, v{b}")
    e(f"v_lshlrev_b32 v{a}, 16, v{t}")
    e(f"v_and_b32 v{b}, s{smask}, v{t}")


def emit_ln(e, xs, T, s_tmp, smask, v_ldsaddr, lds_off):
    vs, vc, vmean, t0, t1, vq, vsq, vr = T[:8]
    for x in xs:
        e(f"v_lshlrev_b32 v{x}, 16, v{x}")
    e(f"v_add_f32 v{vs}, v{xs[0]}, v{xs[1]}")
    for x in xs[2:]:
        e(f"v_add_f32 v{vs}, v{vs}, v{x}")
    wave_reduce_add(e, vs)
    e(f"v_mov_b32 v{vc}, {C_INV576}")
    e(f"v_readlane_b32 s{s_tmp}, v{vs}, 63")
    e(f"v_mul_f32 v{vmean}, s{s_tmp}, v{vc}")
    e(f"v_sub_f32 v{t0}, v{xs[0]}, v{vmean}")
    e(f"v_mul_f32 v{vq}, v{t0}, v{t0}")
    for x in xs[1:]:
        e(f"v_sub_f32 v{t0}, v{x}, v{vmean}")
        e(f"v_fmac_f32 v{vq}, v{t0}, v{t0}")
    wave_reduce_add(e, vq)
    e(f"v_readlane_b32 s{s_tmp}, v{vq}, 63")
    e(f"v_mul_f32 v{vq}, s{s_tmp}, v{vc}")
    rb(e, vq, t0)
    e(f"v_add_f32 v{vq}, {C_EPS}, v{vq}")
    rb(e, vq, t0)
    e(f"v_sqrt_f32 v{vsq}, v{vq}")
    e(f"v_rcp_f32 v{t0}, v{vsq}")
    e(f"v_fma_f32 v{t1}, -v{vsq}, v{vsq}, v{vq}")
    e(f"v_mul_f32 v{t0}, 0.5, v{t0}")
    e(f"v_fma_f32 v{vsq}, v{t1}, v{t0}, v{vsq}")
    rb(e, vsq, t0)
    e(f"v_rcp_f32 v{vr}, v{vsq}")
    rb(e, vmean, t0)
    for x in xs:
        e(f"v_sub_f32 v{x}, v{x}, v{vmean}")
    for i in range(0, 8, 2):
        rb2(e, xs[i], xs[i + 1], t0, smask)
    rb(e, xs[8], t0)
    for x in xs:
        e(f"v_mul_f32 v{t0}, v{x}, v{vr}")
        e(f"v_fma_f32 v{t1}, -v{t0}, v{vsq}, v{x}")
        e(f"v_fma_f32 v{x}, v{t1}, v{vr}, v{t0}")
    for i in range(0, 8, 2):
        rb2(e, xs[i], xs[i + 1], t0, smask)
    rb(e, xs[8], t0)
    for i, x in enumerate(xs):
        e(f"ds_write_b32 v{v_ldsaddr}, v{x} offset:{lds_off + 4 * i}")


def kernel_desc(name, vgpr, sgpr=100):
    vg = (vgpr + 3) // 4 * 4
    return f"""
.section .rodata,"a"
.p2align 6
.amdhsa_kernel {name}
  .amdhsa_next_free_vgpr {vg}
  .amdhsa_next_free_sgpr {sgpr}
  .amdhsa_accum_offset {vg}
  .amdhsa_group_segment_fixed_size 0
  .amdhsa_kernarg_size 96
  .amdhsa_user_sgpr_count 2
  .amdhsa_user_sgpr_kernarg_segment_ptr 1
  .amdhsa_system_sgpr_workgroup_id_x 1
.end_amdhsa_kernel
"""


def kernel_head(name):
    return f""".text
.globl {name}
.p2align 8
.type {name},@function
"""
```

```python
import sys
from asmgen import Emitter
from common import *

P1_OFF = 0
PACC_OFF = 0x40000
PML_OFF = 0x80000
PART_OFF = 0x100000
STAMP_OFF = 0x400000
WS_BYTES = 268435456
NCOL1 = 13312


def stamp_begin(e, sreg):
    e(f"s_memrealtime s[{sreg}:{sreg+1}]")


def stamp_end(e, kidx, s_begin, s_end, ws_srd, vt):
    e(f"s_memrealtime s[{s_end}:{s_end+1}]")
    e("s_waitcnt lgkmcnt(0)")
    e(f"v_mov_b32 v{vt}, s{s_begin}")
    e(f"v_mov_b32 v{vt+1}, s{s_begin+1}")
    e(f"v_mov_b32 v{vt+2}, s{s_end}")
    e(f"v_mov_b32 v{vt+3}, s{s_end+1}")
    e(f"s_lshl_b32 s{s_end}, s2, 4")
    e(f"s_add_u32 s{s_end}, s{s_end}, {STAMP_OFF + kidx * 0x4000}")
    e(f"v_mov_b32 v{vt+4}, 0")
    e(f"buffer_store_dwordx4 v[{vt}:{vt+3}], v{vt+4}, s[{ws_srd}:{ws_srd+3}], s{s_end} offen")


def k1(e, stamps):
    name = "proj_kernel"
    XN, RED = 0, 2304
    e(kernel_head(name))
    e.label(name)
    e("s_cmp_ge_u32 s2, 208")
    e("s_cbranch_scc1 L_k1_end")
    if stamps:
        stamp_begin(e, 70)
    e(f"s_load_dwordx2 s[4:5], s[0:1], {KA_X}")
    e(f"s_load_dwordx2 s[6:7], s[0:1], {KA_WQ}")
    e(f"s_load_dwordx4 s[8:11], s[0:1], {KA_WG}")
    e(f"s_load_dwordx2 s[12:13], s[0:1], {KA_WS}")
    e("v_lshrrev_b32 v1, 6, v0")
    e("v_and_b32 v2, 63, v0")
    e("v_readfirstlane_b32 s16, v1")
    e("s_mov_b32 s14, 0")
    for lim in (52, 104, 156):
        e(f"s_cmp_ge_u32 s2, {lim}")
        e("s_addc_u32 s14, s14, 0")
    e("s_mul_i32 s15, s14, 52")
    e("s_sub_u32 s15, s2, s15")
    e("s_mov_b32 s40, 0xffff0000")
    e("v_mul_u32_u24 v5, 18, v2")
    e("v_mul_u32_u24 v6, 36, v2")
    e("s_waitcnt lgkmcnt(0)")
    srd(e, 24, 4, 1152)
    for i in range(9):
        e(f"buffer_load_ushort v{8+i}, v5, s[24:27], 0 offen offset:{2*i}")
    e("s_mov_b32 s20, s6")
    e("s_mov_b32 s21, s7")
    e("s_mov_b32 s17, 8192")
    e("s_mov_b32 s19, 0")
    e("s_cmp_ge_u32 s15, 16")
    e("s_cselect_b32 s20, s8, s20")
    e("s_cselect_b32 s21, s9, s21")
    e("s_cselect_b32 s17, 9216, s17")
    e("s_cselect_b32 s19, 16, s19")
    e("s_cmp_ge_u32 s15, 34")
    e("s_cselect_b32 s20, s10, s20")
    e("s_cselect_b32 s21, s11, s21")
    e("s_cselect_b32 s19, 34, s19")
    e("s_sub_u32 s18, s15, s19")
    e("s_mul_i32 s22, s17, 576")
    e("s_mov_b32 s23, 0x20000")
    e("s_mul_i32 s32, s14, 144")
    e("s_lshl_b32 s33, s16, 4")
    e("s_add_u32 s44, s32, s33")
    e("s_mul_i32 s32, s44, s17")
    e("s_lshl_b32 s33, s18, 9")
    e("s_add_u32 s32, s32, s33")
    for i in range(1, 8):
        e(f"s_add_u32 s{32+i}, s{32+i-1}, s17")
    e("s_lshl_b32 s45, s17, 3")
    e("v_and_b32 v3, 31, v2")
    e("v_lshlrev_b32 v3, 4, v3")
    e("v_lshrrev_b32 v4, 5, v2")
    e("v_mul_lo_u32 v4, v4, s45")
    e("v_add_u32 v3, v3, v4")
    for i in range(8):
        e(f"buffer_load_dwordx4 v[{32+4*i}:{35+4*i}], v3, s[20:23], s{32+i} offen")
    srd(e, 28, 12, WS_BYTES)
    e("v_lshrrev_b32 v7, 5, v2")
    e("v_lshlrev_b32 v7, 5, v7")
    e("s_lshl_b32 s46, s44, 2")
    e("v_add_u32 v7, s46, v7")
    e("v_and_b32 v80, 31, v2")
    e("v_lshlrev_b32 v80, 5, v80")
    e("v_lshrrev_b32 v81, 5, v2")
    e("v_lshlrev_b32 v81, 4, v81")
    e("v_add_u32 v80, v80, v81")
    e("s_lshl_b32 s47, s16, 10")
    e(f"s_add_u32 s47, s47, {RED}")
    e("v_add_u32 v80, s47, v80")
    e("s_waitcnt vmcnt(8)")
    emit_ln(e, list(range(8, 17)), list(range(17, 24)) + [72], 41, 40, 6, XN)
    e(f"ds_read_b128 v[24:27], v7 offset:{XN}")
    e(f"ds_read_b128 v[28:31], v7 offset:{XN+16}")
    for i in range(8):
        if i == 0:
            e("s_waitcnt vmcnt(7) lgkmcnt(0)")
        else:
            e(f"s_waitcnt vmcnt({7-i})")
        for j in range(4):
            d = 32 + 4 * i + j
            ta, tb = 72 + 2 * (j % 2), 73 + 2 * (j % 2)
            e(f"v_lshlrev_b32 v{ta}, 16, v{d}")
            e(f"v_and_b32 v{tb}, s40, v{d}")
            if i == 0:
                e(f"v_mul_f32 v{64+2*j}, v{24+i}, v{ta}")
                e(f"v_mul_f32 v{65+2*j}, v{24+i}, v{tb}")
            else:
                e(f"v_fmac_f32 v{64+2*j}, v{24+i}, v{ta}")
                e(f"v_fmac_f32 v{65+2*j}, v{24+i}, v{tb}")
    for j in range(4):
        e(f"v_permlane32_swap_b32 v{64+j}, v{68+j}")
    for j in range(4):
        e(f"v_add_f32 v{76+j}, v{64+j}, v{68+j}")
    e("ds_write_b128 v80, v[76:79]")
    e("s_waitcnt lgkmcnt(0)")
    e("s_barrier")
    e("s_cmp_lg_u32 s16, 0")
    e("s_cbranch_scc1 L_k1_end")
    e("v_lshlrev_b32 v1, 4, v2")
    for s in range(9):
        e(f"ds_read_b128 v[{32+4*s}:{35+4*s}], v1 offset:{RED + 1024*s}")
    e("s_mul_i32 s34, s14, %d" % NCOL1)
    e("s_lshl_b32 s35, s15, 8")
    e("s_add_u32 s34, s34, s35")
    e("s_lshl_b32 s34, s34, 2")
    if P1_OFF:
        e(f"s_add_u32 s34, s34, {P1_OFF}")
    for s in range(1, 9):
        e(f"s_waitcnt lgkmcnt({8-s})")
        for j in range(4):
            e(f"v_add_f32 v{32+j}, v{32+j}, v{32+4*s+j}")
    e("buffer_store_dwordx4 v[32:35], v1, s[28:31], s34 offen")
    if stamps:
        stamp_end(e, 0, 70, 72, 28, 40)
    e.label("L_k1_end")
    e("s_endpgm")
    e(kernel_desc(name, 84))
    return name, 208, 576, RED + 9 * 1024


def k2(e, stamps):
    name = "attn_kernel"
    QL, OACC, ML = 0, 512, 512 + 8192
    e(kernel_head(name))
    e.label(name)
    e("s_cmp_ge_u32 s2, 256")
    e("s_cbranch_scc1 L_k2_end")
    if stamps:
        stamp_begin(e, 70)
    e(f"s_load_dwordx4 s[4:7], s[0:1], {KA_K}")
    e(f"s_load_dwordx2 s[8:9], s[0:1], {KA_WS}")
    e("v_lshrrev_b32 v1, 6, v0")
    e("v_and_b32 v2, 63, v0")
    e("v_readfirstlane_b32 s16, v1")
    e("s_lshr_b32 s14, s2, 4")
    e("s_and_b32 s15, s2, 15")
    e(f"s_mov_b32 s40, {C_SCALE}")
    e(f"s_mov_b32 s41, {C_LOG2E}")
    e("s_waitcnt lgkmcnt(0)")
    srd(e, 20, 4, 33554432)
    srd(e, 24, 6, 33554432)
    srd(e, 28, 8, WS_BYTES)
    e("s_cmp_eq_u32 s16, 8")
    e("s_cbranch_scc1 L_k2_helper")
    e("s_lshl_b32 s32, s14, 21")
    e("s_lshl_b32 s33, s15, 15")
    e("s_lshl_b32 s34, s16, 12")
    e("s_add_u32 s32, s32, s33")
    e("s_add_u32 s32, s32, s34")
    e("s_add_u32 s32, s32, 0x180000")
    e("v_and_b32 v3, 15, v2")
    e("v_lshlrev_b32 v3, 8, v3")
    e("v_lshrrev_b32 v5, 4, v2")
    e("v_lshlrev_b32 v4, 4, v5")
    e("v_add_u32 v3, v3, v4")
    e("v_lshlrev_b32 v4, 4, v2")
    for i in range(4):
        e(f"buffer_load_dwordx4 v[{12+4*i}:{15+4*i}], v3, s[20:23], s32 offen offset:{64*i}")
    for i in range(4):
        e(f"buffer_load_dwordx4 v[{28+4*i}:{31+4*i}], v4, s[24:27], s32 offen offset:{1024*i}")
    e("v_and_b32 v70, 7, v2")
    e("v_and_b32 v71, 1, v70")
    e("v_lshlrev_b32 v71, 4, v71")
    e("v_mov_b32 v72, 0xffff")
    e("v_lshlrev_b32 v72, v71, v72")
    e("v_lshrrev_b32 v70, 1, v70")
    for k in range(4):
        e(f"v_cmp_eq_u32 vcc, {k}, v70")
        e(f"v_cndmask_b32 v{8+k}, 0, v72, vcc")
    e("v_bfe_u32 v6, v2, 3, 1")
    e("v_lshlrev_b32 v6, 6, v6")
    e("v_lshlrev_b32 v70, 2, v5")
    e("v_add_u32 v6, v6, v70")
    e("v_bfe_u32 v73, v2, 2, 1")
    e("v_lshlrev_b32 v73, 8, v73")
    e("v_lshlrev_b32 v70, 4, v5")
    e("v_add_u32 v73, v73, v70")
    e("v_lshrrev_b32 v7, 5, v2")
    e("v_lshlrev_b32 v7, 9, v7")
    e("v_and_b32 v70, 15, v2")
    e("v_lshlrev_b32 v70, 5, v70")
    e("v_add_u32 v7, v7, v70")
    e("v_bfe_u32 v70, v2, 4, 1")
    e("v_lshlrev_b32 v71, 4, v70")
    e("v_add_u32 v7, v7, v71")
    e("s_lshl_b32 s35, s16, 10")
    e(f"s_add_u32 s35, s35, {OACC}")
    e("v_add_u32 v7, s35, v7")
    e("v_lshlrev_b32 v69, 3, v70")
    e("s_lshl_b32 s35, s16, 4")
    e(f"s_add_u32 s35, s35, {ML}")
    e("v_add_u32 v69, s35, v69")
    e("s_barrier")
    for i in range(4):
        e(f"ds_read_b128 v[{44+4*i}:{47+4*i}], v73 offset:{QL + 64*i}")
    e("s_waitcnt vmcnt(4) lgkmcnt(0)")
    for i in range(4):
        c = "0" if i == 0 else "v[60:63]"
        e(f"v_mfma_f32_16x16x32_bf16 v[60:63], v[{44+4*i}:{47+4*i}], v[{12+4*i}:{15+4*i}], {c}")
    e("v_cvt_pk_bf16_f32 v70, v60, v60")
    e("v_lshlrev_b32 v70, 16, v70")
    e("v_mul_f32 v70, s40, v70")
    rb(e, 70, 71)
    e("v_mov_b32 v74, v70")
    row_allreduce(e, "v_max_f32", 74)
    e("v_sub_f32 v70, v70, v74")
    e("v_mul_f32 v70, s41, v70")
    e("v_exp_f32 v70, v70")
    e("v_mov_b32 v75, v70")
    row_allreduce(e, "v_add_f32", 75)
    e("v_cvt_pk_bf16_f32 v71, v70, v70")
    e("ds_write_b64 v69, v[74:75]")
    for i in range(4):
        e(f"ds_bpermute_b32 v{76+i}, v6, v71 offset:{16*i}")
    for i in range(4):
        e(f"s_waitcnt vmcnt({3-i}) lgkmcnt({3-i})")
        for k in range(4):
            e(f"v_and_b32 v{80+4*(i%2)+k}, v{8+k}, v{76+i}")
        c = "0" if i == 0 else "v[64:67]"
        a = 80 + 4 * (i % 2)
        e(f"v_mfma_f32_16x16x32_bf16 v[64:67], v[{a}:{a+3}], v[{28+4*i}:{31+4*i}], {c}")
    e("ds_write_b128 v7, v[64:67]")
    e("s_waitcnt lgkmcnt(0)")
    e("s_barrier")
    e("s_cmp_ge_u32 s16, 4")
    e("s_cbranch_scc1 L_k2_end")
    e("s_lshr_b32 s35, s16, 1")
    e("s_lshl_b32 s36, s35, 3")
    e(f"s_add_u32 s36, s36, {ML}")
    e("v_mov_b32 v3, s36")
    e("v_lshlrev_b32 v4, 2, v0")
    for w in range(8):
        e(f"ds_read_b64 v[{12+2*w}:{13+2*w}], v3 offset:{16*w}")
    for w in range(8):
        e(f"ds_read_b32 v{28+w}, v4 offset:{OACC + 1024*w}")
    e("s_lshl_b32 s37, s14, 1")
    e("s_add_u32 s37, s37, s35")
    e("s_lshl_b32 s37, s37, 4")
    e("s_add_u32 s37, s37, s15")
    e("s_lshl_b32 s38, s37, 9")
    e(f"s_add_u32 s38, s38, {PACC_OFF}")
    e("s_lshl_b32 s39, s37, 3")
    e(f"s_add_u32 s39, s39, {PML_OFF}")
    e("v_and_b32 v5, 127, v0")
    e("s_waitcnt lgkmcnt(8)")
    e("v_max3_f32 v40, v12, v14, v16")
    e("v_max3_f32 v40, v40, v18, v20")
    e("v_max3_f32 v40, v40, v22, v24")
    e("v_max_f32 v40, v40, v26")
    for w in range(8):
        e(f"v_sub_f32 v{44+w}, v{12+2*w}, v40")
    for w in range(8):
        e(f"v_mul_f32 v{44+w}, s41, v{44+w}")
    for w in range(8):
        e(f"v_exp_f32 v{44+w}, v{44+w}")
    e("v_mul_f32 v41, v44, v13")
    for w in range(1, 8):
        e(f"v_fmac_f32 v41, v{44+w}, v{13+2*w}")
    e("s_waitcnt lgkmcnt(0)")
    e("v_mul_f32 v42, v44, v28")
    for w in range(1, 8):
        e(f"v_fmac_f32 v42, v{44+w}, v{28+w}")
    e("v_lshlrev_b32 v6, 2, v5")
    e("buffer_store_dword v42, v6, s[28:31], s38 offen")
    e("v_cmp_eq_u32 vcc, 0, v5")
    e("s_and_saveexec_b64 s[50:51], vcc")
    e("s_cbranch_execz L_k2_end")
    e("buffer_store_dwordx2 v[40:41], v5, s[28:31], s39 offen")
    if stamps:
        e("s_cmp_lg_u32 s16, 0")
        e("s_cbranch_scc1 L_k2_end")
        stamp_end(e, 1, 70, 72, 28, 44)
    e("s_branch L_k2_end")
    e.label("L_k2_helper")
    e("v_lshlrev_b32 v3, 4, v2")
    e("s_lshl_b32 s32, s14, 10")
    if P1_OFF:
        e(f"s_add_u32 s32, s32, {P1_OFF}")
    for ks in range(4):
        e(f"s_add_u32 s{33+ks}, s32, {ks * NCOL1 * 4}")
        e(f"buffer_load_dwordx4 v[{12+4*ks}:{15+4*ks}], v3, s[28:31], s{33+ks} offen")
    e("v_lshlrev_b32 v4, 3, v2")
    e("s_waitcnt vmcnt(2)")
    for j in range(4):
        e(f"v_add_f32 v{12+j}, v{12+j}, v{16+j}")
    e("s_waitcnt vmcnt(0)")
    for j in range(4):
        e(f"v_add_f32 v{20+j}, v{20+j}, v{24+j}")
    for j in range(4):
        e(f"v_add_f32 v{12+j}, v{12+j}, v{20+j}")
    e("v_cvt_pk_bf16_f32 v16, v12, v13")
    e("v_cvt_pk_bf16_f32 v17, v14, v15")
    e(f"ds_write_b64 v4, v[16:17] offset:{QL}")
    e("s_waitcnt lgkmcnt(0)")
    e("s_barrier")
    e("s_barrier")
    e.label("L_k2_end")
    e("s_endpgm")
    e(kernel_desc(name, 88))
    return name, 256, 576, ML + 128


def k3(e, stamps):
    name = "oproj_kernel"
    XV, RED = 0, 128
    e(kernel_head(name))
    e.label(name)
    e("s_cmp_ge_u32 s2, 272")
    e("s_cbranch_scc1 L_k3_end")
    if stamps:
        stamp_begin(e, 70)
    e(f"s_load_dwordx2 s[4:5], s[0:1], {KA_WO}")
    e(f"s_load_dwordx2 s[6:7], s[0:1], {KA_WD}")
    e(f"s_load_dwordx2 s[8:9], s[0:1], {KA_WS}")
    e("v_lshrrev_b32 v1, 6, v0")
    e("v_and_b32 v2, 63, v0")
    e("v_readfirstlane_b32 s16, v1")
    e(f"s_mov_b32 s41, {C_LOG2E}")
    e("s_mov_b32 s40, 0xffff0000")
    e("v_lshlrev_b32 v3, 4, v0")
    e("v_mul_u32_u24 v4, 911, v0")
    e("v_lshrrev_b32 v4, 16, v4")
    e("v_mul_u32_u24 v5, 72, v4")
    e("v_sub_u32 v5, v0, v5")
    e("s_waitcnt lgkmcnt(0)")
    srd(e, 28, 8, WS_BYTES)
    e("s_mov_b32 s20, s4")
    e("s_mov_b32 s21, s5")
    e("s_mov_b32 s22, 4718592")
    e("s_mov_b32 s15, s2")
    e("s_cmp_ge_u32 s2, 128")
    e("s_cselect_b32 s20, s6, s20")
    e("s_cselect_b32 s21, s7, s21")
    e("s_cselect_b32 s22, 5308416, s22")
    e("s_cselect_b32 s14, 128, 0")
    e("s_mov_b32 s23, 0x20000")
    e("s_sub_u32 s15, s2, s14")
    e("s_mul_i32 s32, s15, 36864")
    for n in range(1, 4):
        e(f"s_add_u32 s{32+n}, s32, {9216*n}")
    e("s_cmp_ge_u32 s2, 128")
    e("s_cbranch_scc1 L_k3_dprep")
    e("s_lshr_b32 s36, s15, 2")
    e("s_and_b32 s37, s15, 3")
    e("v_and_b32 v6, 15, v2")
    e("v_lshrrev_b32 v7, 4, v2")
    e("v_lshlrev_b32 v8, 3, v6")
    e("s_lshl_b32 s38, s36, 7")
    e(f"s_add_u32 s38, s38, {PML_OFF}")
    e("v_lshlrev_b32 v9, 9, v6")
    e("v_lshlrev_b32 v10, 5, v7")
    e("v_add_u32 v9, v9, v10")
    e("s_lshl_b32 s39, s36, 13")
    e("s_lshl_b32 s42, s37, 7")
    e("s_add_u32 s39, s39, s42")
    e(f"s_add_u32 s39, s39, {PACC_OFF}")
    e("buffer_load_dwordx2 v[12:13], v8, s[28:31], s38 offen")
    e("buffer_load_dwordx4 v[16:19], v9, s[28:31], s39 offen")
    e("buffer_load_dwordx4 v[20:23], v9, s[28:31], s39 offen offset:16")
    for n in range(4):
        e(f"buffer_load_dwordx4 v[{32+4*n}:{35+4*n}], v3, s[20:23], s{32+n} offen")
    e("s_waitcnt vmcnt(6)")
    e("v_mov_b32 v14, v12")
    row_allreduce(e, "v_max_f32", 14)
    e("v_sub_f32 v12, v12, v14")
    e("v_mul_f32 v12, s41, v12")
    e("v_exp_f32 v12, v12")
    e("v_mul_f32 v13, v12, v13")
    row_allreduce(e, "v_add_f32", 13)
    e("v_rcp_f32 v14, v13")
    e("v_fma_f32 v15, -v13, v14, 1.0")
    e("v_fma_f32 v14, v15, v14, v14")
    e("v_mul_f32 v12, v12, v14")
    e("s_waitcnt vmcnt(4)")
    for k in range(8):
        e(f"v_mul_f32 v{16+k}, v12, v{16+k}")
    for sh in (8, 4, 2, 1):
        for k in range(8):
            e(f"v_add_f32_dpp v{16+k}, v{16+k}, v{16+k} row_ror:{sh} row_mask:0xf bank_mask:0xf")
    for k in range(0, 8, 2):
        rb2(e, 16 + k, 17 + k, 24, 40)
    e("v_lshlrev_b32 v10, 2, v7")
    for k in range(8):
        e(f"ds_write_b32 v10, v{16+k} offset:{XV + 16*k}")
    e("s_branch L_k3_main")
    e.label("L_k3_dprep")
    e("v_and_b32 v6, 31, v2")
    e("v_lshlrev_b32 v8, 2, v6")
    e("s_lshl_b32 s36, s15, 7")
    for ks in range(4):
        e(f"s_add_u32 s37, s36, {P1_OFF + (ks*NCOL1 + 4096)*4}")
        e(f"buffer_load_dword v{12+ks}, v8, s[28:31], s37 offen")
        e(f"s_add_u32 s38, s36, {P1_OFF + (ks*NCOL1 + 8704)*4}")
        e(f"buffer_load_dword v{16+ks}, v8, s[28:31], s38 offen")
    for n in range(4):
        e(f"buffer_load_dwordx4 v[{32+4*n}:{35+4*n}], v3, s[20:23], s{32+n} offen")
    e("s_waitcnt vmcnt(4)")
    e("v_add_f32 v12, v12, v13")
    e("v_add_f32 v14, v14, v15")
    e("v_add_f32 v16, v16, v17")
    e("v_add_f32 v18, v18, v19")
    e("v_add_f32 v12, v12, v14")
    e("v_add_f32 v16, v16, v18")
    rb2(e, 12, 16, 24, 40)
    e("v_mul_f32 v13, s41, v12")
    e("v_exp_f32 v13, -v13")
    e("v_add_f32 v13, 1.0, v13")
    e("v_rcp_f32 v14, v13")
    e("v_mul_f32 v12, v12, v14")
    rb(e, 12, 24)
    e("v_mul_f32 v12, v12, v16")
    rb(e, 12, 24)
    e("v_and_b32 v10, 7, v6")
    e("v_lshlrev_b32 v10, 4, v10")
    e("v_lshrrev_b32 v11, 3, v6")
    e("v_lshlrev_b32 v11, 2, v11")
    e("v_add_u32 v10, v10, v11")
    e(f"ds_write_b32 v10, v12 offset:{XV}")
    e.label("L_k3_main")
    e("v_lshlrev_b32 v6, 4, v4")
    e(f"ds_read_b128 v[24:27], v6 offset:{XV}")
    e("v_mul_u32_u24 v8, 2304, v4")
    e("v_lshlrev_b32 v9, 5, v5")
    e("v_add_u32 v8, v8, v9")
    for n in range(4):
        if n == 0:
            e("s_waitcnt vmcnt(3) lgkmcnt(0)")
        else:
            e(f"s_waitcnt vmcnt({3-n})")
        for j in range(4):
            d = 32 + 4 * n + j
            ta, tb = 56 + 2 * (j % 2), 57 + 2 * (j % 2)
            e(f"v_lshlrev_b32 v{ta}, 16, v{d}")
            e(f"v_and_b32 v{tb}, s40, v{d}")
            if n == 0:
                e(f"v_mul_f32 v{48+2*j}, v{24+n}, v{ta}")
                e(f"v_mul_f32 v{49+2*j}, v{24+n}, v{tb}")
            else:
                e(f"v_fmac_f32 v{48+2*j}, v{24+n}, v{ta}")
                e(f"v_fmac_f32 v{49+2*j}, v{24+n}, v{tb}")
    e(f"ds_write_b128 v8, v[48:51] offset:{RED}")
    e(f"ds_write_b128 v8, v[52:55] offset:{RED+16}")
    e("s_waitcnt lgkmcnt(0)")
    e("s_barrier")
    e("v_lshlrev_b32 v6, 2, v0")
    for r in range(8):
        e(f"ds_read_b32 v{32+r}, v6 offset:{RED + 2304*r}")
    e("s_mul_i32 s36, s2, 2304")
    e(f"s_add_u32 s36, s36, {PART_OFF}")
    for r in range(1, 8):
        e(f"s_waitcnt lgkmcnt({7-r})")
        e(f"v_add_f32 v32, v32, v{32+r}")
    e("buffer_store_dword v32, v6, s[28:31], s36 offen")
    if stamps:
        e("s_cmp_lg_u32 s16, 0")
        e("s_cbranch_scc1 L_k3_end")
        stamp_end(e, 2, 70, 72, 28, 44)
    e.label("L_k3_end")
    e("s_endpgm")
    e(kernel_desc(name, 64))
    return name, 272, 576, RED + 8 * 2304


def k4(e, stamps):
    name = "final_kernel"
    RS, RF = 0, 4096
    e(kernel_head(name))
    e.label(name)
    e("s_cmp_ge_u32 s2, 9")
    e("s_cbranch_scc1 L_k4_end")
    if stamps:
        stamp_begin(e, 70)
    e(f"s_load_dwordx2 s[4:5], s[0:1], {KA_X}")
    e(f"s_load_dwordx2 s[6:7], s[0:1], {KA_OUT}")
    e(f"s_load_dwordx2 s[8:9], s[0:1], {KA_WS}")
    e(f"s_mov_b32 s41, {C_LOG2E}")
    e("s_mov_b32 s40, 0xffff0000")
    e("v_and_b32 v2, 15, v0")
    e("v_lshrrev_b32 v3, 4, v0")
    e("v_mul_u32_u24 v4, 2304, v3")
    e("v_lshlrev_b32 v5, 4, v2")
    e("v_add_u32 v4, v4, v5")
    e("s_lshl_b32 s32, s2, 8")
    e(f"s_add_u32 s32, s32, {PART_OFF}")
    e("s_waitcnt lgkmcnt(0)")
    srd(e, 20, 4, 1152)
    srd(e, 24, 6, 1152)
    srd(e, 28, 8, WS_BYTES)
    for n in range(17):
        e(f"s_add_u32 s{44+n}, s32, {n*16*2304}")
        e(f"buffer_load_dwordx4 v[{8+4*n}:{11+4*n}], v4, s[28:31], s{44+n} offen")
    e("v_lshlrev_b32 v6, 1, v0")
    e("s_lshl_b32 s33, s2, 7")
    e("buffer_load_ushort v80, v6, s[20:23], s33 offen")
    for n in range(1, 8):
        e(f"s_waitcnt vmcnt({17-n})")
        for j in range(4):
            e(f"v_add_f32 v{8+j}, v{8+j}, v{8+4*n+j}")
    for n in range(9, 17):
        e(f"s_waitcnt vmcnt({17-n})")
        for j in range(4):
            e(f"v_add_f32 v{40+j}, v{40+j}, v{8+4*n+j}")
    e("v_lshlrev_b32 v5, 4, v0")
    e(f"ds_write_b128 v5, v[8:11] offset:{RS}")
    e(f"ds_write_b128 v5, v[40:43] offset:{RF}")
    e("s_waitcnt lgkmcnt(0)")
    e("s_barrier")
    e("s_cmp_ge_u32 s2, 9")
    e("v_readfirstlane_b32 s16, v0")
    e("s_cmp_lg_u32 s16, 0")
    e("s_cbranch_scc1 L_k4_end")
    e("v_lshlrev_b32 v5, 2, v0")
    for p in range(16):
        e(f"ds_read_b32 v{8+p}, v5 offset:{RS + 256*p}")
    for p in range(16):
        e(f"ds_read_b32 v{40+p}, v5 offset:{RF + 256*p}")
    for p in range(1, 16):
        e(f"s_waitcnt lgkmcnt({min(15, 31-p)})")
        e(f"v_add_f32 v8, v8, v{8+p}")
    for p in range(1, 16):
        e(f"s_waitcnt lgkmcnt({15-p})")
        e(f"v_add_f32 v40, v40, v{40+p}")
    e("s_waitcnt vmcnt(0)")
    e("v_lshlrev_b32 v80, 16, v80")
    rb2(e, 8, 40, 9, 40)
    e("v_mul_f32 v10, s41, v40")
    e("v_exp_f32 v10, -v10")
    e("v_add_f32 v10, 1.0, v10")
    e("v_rcp_f32 v11, v10")
    e("v_mul_f32 v40, v40, v11")
    rb(e, 40, 9)
    e("v_mul_f32 v8, v8, v40")
    rb(e, 8, 9)
    e("v_add_f32 v8, v80, v8")
    e("v_cvt_pk_bf16_f32 v8, v8, v8")
    e("buffer_store_short v8, v6, s[24:27], s33 offen")
    if stamps:
        stamp_end(e, 3, 70, 72, 28, 84)
    e.label("L_k4_end")
    e("s_endpgm")
    e(kernel_desc(name, 92))
    return name, 9, 256, 8192


def build(stamps=False):
    body = []
    launches = []
    for fn in (k1, k2, k3, k4):
        e = Emitter()
        name, grid, block, lds = fn(e, stamps)
        body.append(e.text())
        launches.append(f"; @launch kernel={name} grid=({grid},1,1) block=({block},1,1) lds={lds}")
    out = HEADER + "\n".join(launches) + "\n" + '.amdgcn_target "amdgcn-amd-amdhsa--gfx950"\n' + "\n".join(body)
    return out


if __name__ == "__main__":
    stamps = "--stamps" in sys.argv
    path = [a for a in sys.argv[1:] if not a.startswith("--")][0]
    open(path, "w").write(build(stamps))
```

```python
import sys
from asmgen import Emitter
from common import *

P1_OFF = 0
PACC_OFF = 0x40000
PML_OFF = 0x80000
PART_OFF = 0x100000
STAMP_OFF = 0x400000
WS_BYTES = 268435456
NCOL1 = 13312


NSTAMP = 12
S_ST = 72


class St:
    def __init__(self, e, on, kidx):
        self.e, self.on, self.kidx = e, on, kidx
        self.n = 0

    def __call__(self):
        if not self.on:
            return
        i = self.n
        self.n += 1
        assert i < NSTAMP
        self.e(f"s_memrealtime s[{S_ST+2*i}:{S_ST+2*i+1}]")

    def flush(self, ws_srd, vt, s_wave, s_tmp):
        if not self.on:
            return
        e = self.e
        self()
        e("s_waitcnt lgkmcnt(0) vmcnt(0)")
        e("s_mov_b64 exec, 1")
        e(f"s_lshl_b32 s{s_tmp}, s2, 4")
        e(f"s_add_u32 s{s_tmp}, s{s_tmp}, s{s_wave}")
        e(f"s_lshl_b32 s{s_tmp}, s{s_tmp}, 7")
        e(f"s_add_u32 s{s_tmp}, s{s_tmp}, {STAMP_OFF + self.kidx * 0x80000}")
        e(f"v_mov_b32 v{vt+4}, 0")
        for i in range(0, self.n, 2):
            e(f"v_mov_b32 v{vt}, s{S_ST+2*i}")
            e(f"v_mov_b32 v{vt+1}, s{S_ST+2*i+1}")
            e(f"v_mov_b32 v{vt+2}, s{S_ST+2*i+2}")
            e(f"v_mov_b32 v{vt+3}, s{S_ST+2*i+3}")
            e(f"buffer_store_dwordx4 v[{vt}:{vt+3}], v{vt+4}, s[{ws_srd}:{ws_srd+3}], s{s_tmp} offen offset:{8*i}")


def k1(e, stamps):
    name = "proj_kernel"
    XN, RED = 0, 2304
    e(kernel_head(name))
    e.label(name)
    e("s_cmp_ge_u32 s2, 208")
    e("s_cbranch_scc1 L_k1_exit")
    st = St(e, stamps, 0)
    st()
    e(f"s_load_dwordx2 s[4:5], s[0:1], {KA_X}")
    e(f"s_load_dwordx2 s[6:7], s[0:1], {KA_WQ}")
    e(f"s_load_dwordx4 s[8:11], s[0:1], {KA_WG}")
    e(f"s_load_dwordx2 s[12:13], s[0:1], {KA_WS}")
    e("v_lshrrev_b32 v1, 6, v0")
    e("v_and_b32 v2, 63, v0")
    e("v_readfirstlane_b32 s16, v1")
    e("s_mov_b32 s14, 0")
    for lim in (52, 104, 156):
        e(f"s_cmp_ge_u32 s2, {lim}")
        e("s_addc_u32 s14, s14, 0")
    e("s_mul_i32 s15, s14, 52")
    e("s_sub_u32 s15, s2, s15")
    e("s_mov_b32 s40, 0xffff0000")
    e("v_mul_u32_u24 v5, 18, v2")
    e("v_mul_u32_u24 v6, 36, v2")
    e("s_waitcnt lgkmcnt(0)")
    st()
    srd(e, 24, 4, 1152)
    e("s_cmp_lg_u32 s16, 0")
    e("s_cbranch_scc1 L_k1_a")
    for i in range(9):
        e(f"buffer_load_ushort v{8+i}, v5, s[24:27], 0 offen offset:{2*i}")
    e.label("L_k1_a")
    e("s_mov_b32 s20, s6")
    e("s_mov_b32 s21, s7")
    e("s_mov_b32 s17, 8192")
    e("s_mov_b32 s19, 0")
    e("s_cmp_ge_u32 s15, 16")
    e("s_cselect_b32 s20, s8, s20")
    e("s_cselect_b32 s21, s9, s21")
    e("s_cselect_b32 s17, 9216, s17")
    e("s_cselect_b32 s19, 16, s19")
    e("s_cmp_ge_u32 s15, 34")
    e("s_cselect_b32 s20, s10, s20")
    e("s_cselect_b32 s21, s11, s21")
    e("s_cselect_b32 s19, 34, s19")
    e("s_sub_u32 s18, s15, s19")
    e("s_mul_i32 s22, s17, 576")
    e("s_mov_b32 s23, 0x20000")
    e("s_mul_i32 s32, s14, 144")
    e("s_lshl_b32 s33, s16, 4")
    e("s_add_u32 s44, s32, s33")
    e("s_mul_i32 s32, s44, s17")
    e("s_lshl_b32 s33, s18, 9")
    e("s_add_u32 s32, s32, s33")
    for i in range(1, 8):
        e(f"s_add_u32 s{32+i}, s{32+i-1}, s17")
    e("s_lshl_b32 s45, s17, 3")
    e("v_and_b32 v3, 31, v2")
    e("v_lshlrev_b32 v3, 4, v3")
    e("v_lshrrev_b32 v4, 5, v2")
    e("v_mul_lo_u32 v4, v4, s45")
    e("v_add_u32 v3, v3, v4")
    e("s_barrier")
    for i in range(8):
        e(f"buffer_load_dwordx4 v[{32+4*i}:{35+4*i}], v3, s[20:23], s{32+i} offen nt")
    srd(e, 28, 12, WS_BYTES)
    e("v_lshrrev_b32 v7, 5, v2")
    e("v_lshlrev_b32 v7, 5, v7")
    e("s_lshl_b32 s46, s44, 2")
    e("v_add_u32 v7, s46, v7")
    e("v_and_b32 v80, 31, v2")
    e("v_lshlrev_b32 v80, 5, v80")
    e("v_lshrrev_b32 v81, 5, v2")
    e("v_lshlrev_b32 v81, 4, v81")
    e("v_add_u32 v80, v80, v81")
    e("s_lshl_b32 s47, s16, 10")
    e(f"s_add_u32 s47, s47, {RED}")
    e("v_add_u32 v80, s47, v80")
    e("s_cmp_lg_u32 s16, 0")
    e("s_cbranch_scc1 L_k1_b")
    e("s_waitcnt vmcnt(8)")
    emit_ln(e, list(range(8, 17)), list(range(17, 24)) + [72], 41, 40, 6, XN)
    e("s_waitcnt lgkmcnt(0)")
    e.label("L_k1_b")
    st()
    e("s_barrier")
    e(f"ds_read_b128 v[24:27], v7 offset:{XN}")
    e(f"ds_read_b128 v[28:31], v7 offset:{XN+16}")
    for i in range(8):
        if i == 0:
            e("s_waitcnt lgkmcnt(0)")
            st()
            e("s_waitcnt vmcnt(7)")
            st()
        else:
            e(f"s_waitcnt vmcnt({7-i})")
        if i == 7:
            st()
        for j in range(4):
            d = 32 + 4 * i + j
            ta, tb = 72 + 2 * (j % 2), 73 + 2 * (j % 2)
            e(f"v_lshlrev_b32 v{ta}, 16, v{d}")
            e(f"v_and_b32 v{tb}, s40, v{d}")
            if i == 0:
                e(f"v_mul_f32 v{64+2*j}, v{24+i}, v{ta}")
                e(f"v_mul_f32 v{65+2*j}, v{24+i}, v{tb}")
            else:
                e(f"v_fmac_f32 v{64+2*j}, v{24+i}, v{ta}")
                e(f"v_fmac_f32 v{65+2*j}, v{24+i}, v{tb}")
    for j in range(4):
        e(f"v_permlane32_swap_b32 v{64+j}, v{68+j}")
    for j in range(4):
        e(f"v_add_f32 v{76+j}, v{64+j}, v{68+j}")
    e("ds_write_b128 v80, v[76:79]")
    e("s_waitcnt lgkmcnt(0)")
    e("s_barrier")
    st()
    e("s_cmp_lg_u32 s16, 0")
    e("s_cbranch_scc1 L_k1_end")
    e("v_lshlrev_b32 v1, 4, v2")
    for s in range(9):
        e(f"ds_read_b128 v[{32+4*s}:{35+4*s}], v1 offset:{RED + 1024*s}")
    e("s_mul_i32 s34, s14, %d" % NCOL1)
    e("s_lshl_b32 s35, s15, 8")
    e("s_add_u32 s34, s34, s35")
    e("s_lshl_b32 s34, s34, 2")
    if P1_OFF:
        e(f"s_add_u32 s34, s34, {P1_OFF}")
    for s in range(1, 9):
        e(f"s_waitcnt lgkmcnt({8-s})")
        for j in range(4):
            e(f"v_add_f32 v{32+j}, v{32+j}, v{32+4*s+j}")
    e("buffer_store_dwordx4 v[32:35], v1, s[28:31], s34 offen")
    e.label("L_k1_end")
    st.flush(28, 40, 16, 36)
    e.label("L_k1_exit")
    e("s_endpgm")
    e(kernel_desc(name, 84))
    return name, 208, 576, RED + 9 * 1024


def k2(e, stamps):
    name = "attn_kernel"
    QL, OACC, ML = 0, 512, 512 + 8192
    e(kernel_head(name))
    e.label(name)
    e("s_cmp_ge_u32 s2, 256")
    e("s_cbranch_scc1 L_k2_exit")
    st = St(e, stamps, 1)
    st()
    e(f"s_load_dwordx4 s[4:7], s[0:1], {KA_K}")
    e(f"s_load_dwordx2 s[8:9], s[0:1], {KA_WS}")
    e("v_lshrrev_b32 v1, 6, v0")
    e("v_and_b32 v2, 63, v0")
    e("v_readfirstlane_b32 s16, v1")
    e("s_lshr_b32 s14, s2, 4")
    e("s_and_b32 s15, s2, 15")
    e(f"s_mov_b32 s40, {C_SCALE}")
    e(f"s_mov_b32 s41, {C_LOG2E}")
    e("s_waitcnt lgkmcnt(0)")
    st()
    srd(e, 20, 4, 33554432)
    srd(e, 24, 6, 33554432)
    srd(e, 28, 8, WS_BYTES)
    e("s_cmp_eq_u32 s16, 0")
    e("s_cbranch_scc1 L_k2_helper")
    e("s_sub_u32 s17, s16, 1")
    e("s_lshl_b32 s32, s14, 21")
    e("s_lshl_b32 s33, s15, 15")
    e("s_lshl_b32 s34, s17, 12")
    e("s_add_u32 s32, s32, s33")
    e("s_add_u32 s32, s32, s34")
    e("s_add_u32 s32, s32, 0x180000")
    e("v_and_b32 v3, 15, v2")
    e("v_lshlrev_b32 v3, 8, v3")
    e("v_lshrrev_b32 v5, 4, v2")
    e("v_lshlrev_b32 v4, 4, v5")
    e("v_add_u32 v3, v3, v4")
    e("v_lshlrev_b32 v4, 4, v2")
    e("s_barrier")
    for i in range(4):
        e(f"buffer_load_dwordx4 v[{12+4*i}:{15+4*i}], v3, s[20:23], s32 offen offset:{64*i} nt")
    for i in range(4):
        e(f"buffer_load_dwordx4 v[{28+4*i}:{31+4*i}], v4, s[24:27], s32 offen offset:{1024*i} nt")
    e("v_and_b32 v70, 7, v2")
    e("v_and_b32 v71, 1, v70")
    e("v_lshlrev_b32 v71, 4, v71")
    e("v_mov_b32 v72, 0xffff")
    e("v_lshlrev_b32 v72, v71, v72")
    e("v_lshrrev_b32 v70, 1, v70")
    for k in range(4):
        e(f"v_cmp_eq_u32 vcc, {k}, v70")
        e(f"v_cndmask_b32 v{8+k}, 0, v72, vcc")
    e("v_bfe_u32 v6, v2, 3, 1")
    e("v_lshlrev_b32 v6, 6, v6")
    e("v_lshlrev_b32 v70, 2, v5")
    e("v_add_u32 v6, v6, v70")
    e("v_bfe_u32 v73, v2, 2, 1")
    e("v_lshlrev_b32 v73, 8, v73")
    e("v_lshlrev_b32 v70, 4, v5")
    e("v_add_u32 v73, v73, v70")
    e("v_lshrrev_b32 v7, 5, v2")
    e("v_lshlrev_b32 v7, 9, v7")
    e("v_and_b32 v70, 15, v2")
    e("v_lshlrev_b32 v70, 5, v70")
    e("v_add_u32 v7, v7, v70")
    e("v_bfe_u32 v70, v2, 4, 1")
    e("v_lshlrev_b32 v71, 4, v70")
    e("v_add_u32 v7, v7, v71")
    e("s_lshl_b32 s35, s17, 10")
    e(f"s_add_u32 s35, s35, {OACC}")
    e("v_add_u32 v7, s35, v7")
    e("v_lshlrev_b32 v69, 3, v70")
    e("s_lshl_b32 s35, s17, 4")
    e(f"s_add_u32 s35, s35, {ML}")
    e("v_add_u32 v69, s35, v69")
    st()
    e("s_barrier")
    st()
    for i in range(4):
        e(f"ds_read_b128 v[{44+4*i}:{47+4*i}], v73 offset:{QL + 64*i}")
    e("s_waitcnt vmcnt(4) lgkmcnt(0)")
    st()
    for i in range(4):
        c = "0" if i == 0 else "v[60:63]"
        e(f"v_mfma_f32_16x16x32_bf16 v[60:63], v[{44+4*i}:{47+4*i}], v[{12+4*i}:{15+4*i}], {c}")
    e("v_cvt_pk_bf16_f32 v70, v60, v60")
    e("v_lshlrev_b32 v70, 16, v70")
    e("v_mul_f32 v70, s40, v70")
    rb(e, 70, 71)
    e("v_mov_b32 v74, v70")
    row_allreduce(e, "v_max_f32", 74)
    e("v_sub_f32 v70, v70, v74")
    e("v_mul_f32 v70, s41, v70")
    e("v_exp_f32 v70, v70")
    e("v_mov_b32 v75, v70")
    row_allreduce(e, "v_add_f32", 75)
    e("v_cvt_pk_bf16_f32 v71, v70, v70")
    e("ds_write_b64 v69, v[74:75]")
    for i in range(4):
        e(f"ds_bpermute_b32 v{76+i}, v6, v71 offset:{16*i}")
    for i in range(4):
        e(f"s_waitcnt vmcnt({3-i}) lgkmcnt({3-i})")
        for k in range(4):
            e(f"v_and_b32 v{80+4*(i%2)+k}, v{8+k}, v{76+i}")
        c = "0" if i == 0 else "v[64:67]"
        a = 80 + 4 * (i % 2)
        e(f"v_mfma_f32_16x16x32_bf16 v[64:67], v[{a}:{a+3}], v[{28+4*i}:{31+4*i}], {c}")
    e("ds_write_b128 v7, v[64:67]")
    e("s_waitcnt lgkmcnt(0)")
    st()
    e("s_barrier")
    st()
    e.label("L_k2_comb")
    e("s_cmp_ge_u32 s16, 4")
    e("s_cbranch_scc1 L_k2_end")
    e("s_lshr_b32 s35, s16, 1")
    e("s_lshl_b32 s36, s35, 3")
    e(f"s_add_u32 s36, s36, {ML}")
    e("v_mov_b32 v3, s36")
    e("v_lshlrev_b32 v4, 2, v0")
    for w in range(8):
        e(f"ds_read_b64 v[{12+2*w}:{13+2*w}], v3 offset:{16*w}")
    for w in range(8):
        e(f"ds_read_b32 v{28+w}, v4 offset:{OACC + 1024*w}")
    e("s_lshl_b32 s37, s14, 1")
    e("s_add_u32 s37, s37, s35")
    e("s_lshl_b32 s37, s37, 4")
    e("s_add_u32 s37, s37, s15")
    e("s_lshl_b32 s38, s37, 9")
    e(f"s_add_u32 s38, s38, {PACC_OFF}")
    e("s_lshl_b32 s39, s37, 3")
    e(f"s_add_u32 s39, s39, {PML_OFF}")
    e("v_and_b32 v5, 127, v0")
    e("s_waitcnt lgkmcnt(8)")
    e("v_max3_f32 v40, v12, v14, v16")
    e("v_max3_f32 v40, v40, v18, v20")
    e("v_max3_f32 v40, v40, v22, v24")
    e("v_max_f32 v40, v40, v26")
    for w in range(8):
        e(f"v_sub_f32 v{44+w}, v{12+2*w}, v40")
    for w in range(8):
        e(f"v_mul_f32 v{44+w}, s41, v{44+w}")
    for w in range(8):
        e(f"v_exp_f32 v{44+w}, v{44+w}")
    e("v_mul_f32 v41, v44, v13")
    for w in range(1, 8):
        e(f"v_fmac_f32 v41, v{44+w}, v{13+2*w}")
    e("s_waitcnt lgkmcnt(0)")
    e("v_mul_f32 v42, v44, v28")
    for w in range(1, 8):
        e(f"v_fmac_f32 v42, v{44+w}, v{28+w}")
    e("v_lshlrev_b32 v6, 2, v5")
    e("buffer_store_dword v42, v6, s[28:31], s38 offen")
    e("v_cmp_eq_u32 vcc, 0, v5")
    e("s_and_saveexec_b64 s[50:51], vcc")
    e("s_cbranch_execz L_k2_end0")
    e("buffer_store_dwordx2 v[40:41], v5, s[28:31], s39 offen")
    e.label("L_k2_end0")
    e("s_mov_b64 exec, s[50:51]")
    e("s_branch L_k2_end")
    e.label("L_k2_helper")
    e("v_lshlrev_b32 v3, 4, v2")
    e("s_lshl_b32 s32, s14, 10")
    if P1_OFF:
        e(f"s_add_u32 s32, s32, {P1_OFF}")
    for ks in range(4):
        e(f"s_add_u32 s{33+ks}, s32, {ks * NCOL1 * 4}")
        e(f"buffer_load_dwordx4 v[{12+4*ks}:{15+4*ks}], v3, s[28:31], s{33+ks} offen")
    e("s_barrier")
    e("v_lshlrev_b32 v4, 3, v2")
    e("s_waitcnt vmcnt(2)")
    for j in range(4):
        e(f"v_add_f32 v{12+j}, v{12+j}, v{16+j}")
    e("s_waitcnt vmcnt(0)")
    for j in range(4):
        e(f"v_add_f32 v{20+j}, v{20+j}, v{24+j}")
    for j in range(4):
        e(f"v_add_f32 v{12+j}, v{12+j}, v{20+j}")
    e("v_cvt_pk_bf16_f32 v16, v12, v13")
    e("v_cvt_pk_bf16_f32 v17, v14, v15")
    e(f"ds_write_b64 v4, v[16:17] offset:{QL}")
    e("s_waitcnt lgkmcnt(0)")
    e("s_barrier")
    e("s_barrier")
    e("s_branch L_k2_comb")
    e.label("L_k2_end")
    st.flush(28, 44, 16, 36)
    e.label("L_k2_exit")
    e("s_endpgm")
    e(kernel_desc(name, 88))
    return name, 256, 576, ML + 128


def k3(e, stamps):
    name = "oproj_kernel"
    XV, RED = 0, 128
    e(kernel_head(name))
    e.label(name)
    e("s_cmp_ge_u32 s2, 272")
    e("s_cbranch_scc1 L_k3_exit")
    st = St(e, stamps, 2)
    st()
    e(f"s_load_dwordx2 s[4:5], s[0:1], {KA_WO}")
    e(f"s_load_dwordx2 s[6:7], s[0:1], {KA_WD}")
    e(f"s_load_dwordx2 s[8:9], s[0:1], {KA_WS}")
    e("v_lshrrev_b32 v1, 6, v0")
    e("v_and_b32 v2, 63, v0")
    e("v_readfirstlane_b32 s16, v1")
    e(f"s_mov_b32 s41, {C_LOG2E}")
    e("s_mov_b32 s43, 0xc2fc0000")
    e("s_mov_b32 s40, 0xffff0000")
    e("v_lshlrev_b32 v3, 4, v0")
    e("v_mul_u32_u24 v4, 911, v0")
    e("v_lshrrev_b32 v4, 16, v4")
    e("v_mul_u32_u24 v5, 72, v4")
    e("v_sub_u32 v5, v0, v5")
    e("s_waitcnt lgkmcnt(0)")
    st()
    srd(e, 28, 8, WS_BYTES)
    e("s_mov_b32 s20, s4")
    e("s_mov_b32 s21, s5")
    e("s_mov_b32 s22, 4718592")
    e("s_mov_b32 s15, s2")
    e("s_cmp_ge_u32 s2, 128")
    e("s_cselect_b32 s20, s6, s20")
    e("s_cselect_b32 s21, s7, s21")
    e("s_cselect_b32 s22, 5308416, s22")
    e("s_cselect_b32 s14, 128, 0")
    e("s_mov_b32 s23, 0x20000")
    e("s_sub_u32 s15, s2, s14")
    e("s_mul_i32 s32, s15, 36864")
    for n in range(1, 4):
        e(f"s_add_u32 s{32+n}, s32, {9216*n}")
    e("s_cmp_lg_u32 s16, 0")
    e("s_cbranch_scc1 L_k3_a")
    e("s_cmp_ge_u32 s2, 128")
    e("s_cbranch_scc1 L_k3_dload")
    e("s_lshr_b32 s36, s15, 2")
    e("s_and_b32 s37, s15, 3")
    e("v_and_b32 v6, 15, v2")
    e("v_lshrrev_b32 v7, 4, v2")
    e("v_lshlrev_b32 v8, 3, v6")
    e("s_lshl_b32 s38, s36, 7")
    e(f"s_add_u32 s38, s38, {PML_OFF}")
    e("v_lshlrev_b32 v9, 9, v6")
    e("v_lshlrev_b32 v10, 5, v7")
    e("v_add_u32 v9, v9, v10")
    e("s_lshl_b32 s39, s36, 13")
    e("s_lshl_b32 s42, s37, 7")
    e("s_add_u32 s39, s39, s42")
    e(f"s_add_u32 s39, s39, {PACC_OFF}")
    e("buffer_load_dwordx2 v[12:13], v8, s[28:31], s38 offen")
    e("buffer_load_dwordx4 v[16:19], v9, s[28:31], s39 offen")
    e("buffer_load_dwordx4 v[20:23], v9, s[28:31], s39 offen offset:16")
    e("s_branch L_k3_a")
    e.label("L_k3_dload")
    e("v_and_b32 v6, 31, v2")
    e("v_lshlrev_b32 v8, 2, v6")
    e("s_lshl_b32 s36, s15, 7")
    for ks in range(4):
        e(f"s_add_u32 s37, s36, {P1_OFF + (ks*NCOL1 + 4096)*4}")
        e(f"buffer_load_dword v{12+ks}, v8, s[28:31], s37 offen")
        e(f"s_add_u32 s38, s36, {P1_OFF + (ks*NCOL1 + 8704)*4}")
        e(f"buffer_load_dword v{16+ks}, v8, s[28:31], s38 offen")
    e.label("L_k3_a")
    e("s_barrier")
    for n in range(4):
        e(f"buffer_load_dwordx4 v[{32+4*n}:{35+4*n}], v3, s[20:23], s{32+n} offen nt")
    e("s_cmp_lg_u32 s16, 0")
    e("s_cbranch_scc1 L_k3_b")
    e("s_cmp_ge_u32 s2, 128")
    e("s_cbranch_scc1 L_k3_dcomp")
    e("s_waitcnt vmcnt(6)")
    e("v_mov_b32 v14, v12")
    row_allreduce(e, "v_max_f32", 14)
    e("v_sub_f32 v12, v12, v14")
    e("v_mul_f32 v12, s41, v12")
    e("v_exp_f32 v12, v12")
    e("v_mul_f32 v13, v12, v13")
    row_allreduce(e, "v_add_f32", 13)
    e("v_rcp_f32 v14, v13")
    e("v_fma_f32 v15, -v13, v14, 1.0")
    e("v_fma_f32 v14, v15, v14, v14")
    e("v_mul_f32 v12, v12, v14")
    e("s_waitcnt vmcnt(4)")
    for k in range(8):
        e(f"v_mul_f32 v{16+k}, v12, v{16+k}")
    for sh in (8, 4, 2, 1):
        for k in range(8):
            e(f"v_add_f32_dpp v{16+k}, v{16+k}, v{16+k} row_ror:{sh} row_mask:0xf bank_mask:0xf")
    for k in range(0, 8, 2):
        rb2(e, 16 + k, 17 + k, 24, 40)
    e("v_lshlrev_b32 v10, 2, v7")
    for k in range(8):
        e(f"ds_write_b32 v10, v{16+k} offset:{XV + 16*k}")
    e("s_branch L_k3_b0")
    e.label("L_k3_dcomp")
    e("s_waitcnt vmcnt(4)")
    e("v_add_f32 v12, v12, v13")
    e("v_add_f32 v14, v14, v15")
    e("v_add_f32 v16, v16, v17")
    e("v_add_f32 v18, v18, v19")
    e("v_add_f32 v12, v12, v14")
    e("v_add_f32 v16, v16, v18")
    rb2(e, 12, 16, 24, 40)
    e("v_mul_f32 v13, s41, v12")
    e("v_max_f32 v13, s43, v13")
    e("v_exp_f32 v13, -v13")
    e("v_add_f32 v13, 1.0, v13")
    e("v_rcp_f32 v14, v13")
    e("v_fma_f32 v15, -v13, v14, 1.0")
    e("v_fma_f32 v14, v15, v14, v14")
    e("v_mul_f32 v12, v12, v14")
    rb(e, 12, 24)
    e("v_mul_f32 v12, v12, v16")
    rb(e, 12, 24)
    e("v_and_b32 v10, 7, v6")
    e("v_lshlrev_b32 v10, 4, v10")
    e("v_lshrrev_b32 v11, 3, v6")
    e("v_lshlrev_b32 v11, 2, v11")
    e("v_add_u32 v10, v10, v11")
    e(f"ds_write_b32 v10, v12 offset:{XV}")
    e.label("L_k3_b0")
    e("s_waitcnt lgkmcnt(0)")
    e.label("L_k3_b")
    e("s_barrier")
    e.label("L_k3_main")
    st()
    e("v_lshlrev_b32 v6, 4, v4")
    e(f"ds_read_b128 v[24:27], v6 offset:{XV}")
    e("v_mul_u32_u24 v8, 2304, v4")
    e("v_lshlrev_b32 v9, 5, v5")
    e("v_add_u32 v8, v8, v9")
    for n in range(4):
        if n == 0:
            e("s_waitcnt vmcnt(3) lgkmcnt(0)")
        else:
            e(f"s_waitcnt vmcnt({3-n})")
        for j in range(4):
            d = 32 + 4 * n + j
            ta, tb = 56 + 2 * (j % 2), 57 + 2 * (j % 2)
            e(f"v_lshlrev_b32 v{ta}, 16, v{d}")
            e(f"v_and_b32 v{tb}, s40, v{d}")
            if n == 0:
                e(f"v_mul_f32 v{48+2*j}, v{24+n}, v{ta}")
                e(f"v_mul_f32 v{49+2*j}, v{24+n}, v{tb}")
            else:
                e(f"v_fmac_f32 v{48+2*j}, v{24+n}, v{ta}")
                e(f"v_fmac_f32 v{49+2*j}, v{24+n}, v{tb}")
    e(f"ds_write_b128 v8, v[48:51] offset:{RED}")
    e(f"ds_write_b128 v8, v[52:55] offset:{RED+16}")
    e("s_waitcnt lgkmcnt(0)")
    st()
    e("s_barrier")
    st()
    e("v_lshlrev_b32 v6, 2, v0")
    for r in range(8):
        e(f"ds_read_b32 v{32+r}, v6 offset:{RED + 2304*r}")
    e("s_mul_i32 s36, s2, 2304")
    e(f"s_add_u32 s36, s36, {PART_OFF}")
    for r in range(1, 8):
        e(f"s_waitcnt lgkmcnt({7-r})")
        e(f"v_add_f32 v32, v32, v{32+r}")
    e("buffer_store_dword v32, v6, s[28:31], s36 offen")
    e.label("L_k3_end")
    st.flush(28, 44, 16, 36)
    e.label("L_k3_exit")
    e("s_endpgm")
    e(kernel_desc(name, 64))
    return name, 272, 576, RED + 8 * 2304


def k4(e, stamps):
    name = "final_kernel"
    RS, RF = 0, 4096
    e(kernel_head(name))
    e.label(name)
    e("s_cmp_ge_u32 s2, 9")
    e("s_cbranch_scc1 L_k4_exit")
    st = St(e, stamps, 3)
    st()
    e(f"s_load_dwordx2 s[4:5], s[0:1], {KA_X}")
    e(f"s_load_dwordx2 s[6:7], s[0:1], {KA_OUT}")
    e(f"s_load_dwordx2 s[8:9], s[0:1], {KA_WS}")
    e(f"s_mov_b32 s41, {C_LOG2E}")
    e("s_mov_b32 s42, 0xc2fc0000")
    e("s_mov_b32 s40, 0xffff0000")
    e("v_and_b32 v2, 15, v0")
    e("v_lshrrev_b32 v3, 4, v0")
    e("v_mul_u32_u24 v4, 2304, v3")
    e("v_lshlrev_b32 v5, 4, v2")
    e("v_add_u32 v4, v4, v5")
    e("s_lshl_b32 s32, s2, 8")
    e(f"s_add_u32 s32, s32, {PART_OFF}")
    e("s_waitcnt lgkmcnt(0)")
    st()
    e("v_lshrrev_b32 v1, 6, v0")
    e("v_readfirstlane_b32 s16, v1")
    srd(e, 20, 4, 1152)
    srd(e, 24, 6, 1152)
    srd(e, 28, 8, WS_BYTES)
    for n in range(17):
        e(f"s_add_u32 s{44+n}, s32, {n*16*2304}")
        e(f"buffer_load_dwordx4 v[{8+4*n}:{11+4*n}], v4, s[28:31], s{44+n} offen")
    e("v_lshlrev_b32 v6, 1, v0")
    e("s_lshl_b32 s33, s2, 7")
    e("buffer_load_ushort v80, v6, s[20:23], s33 offen")
    for n in range(1, 8):
        e(f"s_waitcnt vmcnt({17-n})")
        for j in range(4):
            e(f"v_add_f32 v{8+j}, v{8+j}, v{8+4*n+j}")
    for n in range(9, 17):
        e(f"s_waitcnt vmcnt({17-n})")
        for j in range(4):
            e(f"v_add_f32 v{40+j}, v{40+j}, v{8+4*n+j}")
    e("v_lshlrev_b32 v5, 4, v0")
    e(f"ds_write_b128 v5, v[8:11] offset:{RS}")
    e(f"ds_write_b128 v5, v[40:43] offset:{RF}")
    e("s_waitcnt lgkmcnt(0)")
    st()
    e("s_barrier")
    st()
    e("s_cmp_lg_u32 s16, 0")
    e("s_cbranch_scc1 L_k4_end")
    e("v_lshlrev_b32 v5, 2, v0")
    for p in range(16):
        e(f"ds_read_b32 v{8+p}, v5 offset:{RS + 256*p}")
    for p in range(16):
        e(f"ds_read_b32 v{40+p}, v5 offset:{RF + 256*p}")
    for p in range(1, 16):
        e(f"s_waitcnt lgkmcnt({min(15, 31-p)})")
        e(f"v_add_f32 v8, v8, v{8+p}")
    for p in range(1, 16):
        e(f"s_waitcnt lgkmcnt({15-p})")
        e(f"v_add_f32 v40, v40, v{40+p}")
    e("s_waitcnt vmcnt(0)")
    e("v_lshlrev_b32 v80, 16, v80")
    rb2(e, 8, 40, 9, 40)
    e("v_mul_f32 v10, s41, v40")
    e("v_max_f32 v10, s42, v10")
    e("v_exp_f32 v10, -v10")
    e("v_add_f32 v10, 1.0, v10")
    e("v_rcp_f32 v11, v10")
    e("v_fma_f32 v12, -v10, v11, 1.0")
    e("v_fma_f32 v11, v12, v11, v11")
    e("v_mul_f32 v40, v40, v11")
    rb(e, 40, 9)
    e("v_mul_f32 v8, v8, v40")
    rb(e, 8, 9)
    e("v_add_f32 v8, v80, v8")
    e("v_cvt_pk_bf16_f32 v8, v8, v8")
    e("buffer_store_short v8, v6, s[24:27], s33 offen")
    e.label("L_k4_end")
    st.flush(28, 84, 16, 36)
    e.label("L_k4_exit")
    e("s_endpgm")
    e(kernel_desc(name, 92))
    return name, 9, 256, 8192


def build(stamps=False):
    body = []
    launches = []
    for fn in (k1, k2, k3, k4):
        e = Emitter()
        name, grid, block, lds = fn(e, stamps)
        body.append(e.text())
        launches.append(f"; @launch kernel={name} grid=({grid},1,1) block=({block},1,1) lds={lds}")
    out = HEADER + "\n".join(launches) + "\n" + '.amdgcn_target "amdgcn-amd-amdhsa--gfx950"\n' + "\n".join(body)
    return out


if __name__ == "__main__":
    stamps = "--stamps" in sys.argv
    path = [a for a in sys.argv[1:] if not a.startswith("--")][0]
    open(path, "w").write(build(stamps))
```

```python
import sys
from asmgen import Emitter
from common import *

P1_OFF = 0
PACC_OFF = 0x40000
PML_OFF = 0x80000
PART_OFF = 0x100000
STAMP_OFF = 0x400000
WS_BYTES = 268435456
NCOL1 = 13312


NSTAMP = 12
S_ST = 72


class St:
    def __init__(self, e, on, kidx):
        self.e, self.on, self.kidx = e, on, kidx
        self.n = 0

    def __call__(self):
        if not self.on:
            return
        if self.on == "dbg" and self.n >= 1:
            return
        i = self.n
        self.n += 1
        assert i < NSTAMP
        self.e(f"s_memrealtime s[{S_ST+2*i}:{S_ST+2*i+1}]")

    def flush(self, ws_srd, vt, s_wave, s_tmp):
        if not self.on:
            return
        e = self.e
        if self.on == "dbg":
            e(f"s_memrealtime s[74:75]")
            e(f"s_load_dwordx2 s[76:77], s[0:1], {KA_DBG}")
            e("s_waitcnt lgkmcnt(0) vmcnt(0)")
            e(f"s_cmp_lg_u32 s{s_wave}, 0")
            e(f"s_cbranch_scc1 L_dbg_skip{self.kidx}")
            e("s_and_b32 s78, s2, 15")
            e("s_cmp_lg_u32 s78, 0")
            e(f"s_cbranch_scc1 L_dbg_skip{self.kidx}")
            e(f"s_sub_u32 s76, s76, {512*self.kidx}")
            e("s_subb_u32 s77, s77, 0")
            e("s_mov_b32 s78, 256")
            e("s_mov_b32 s79, 0x20000")
            e("s_mov_b64 exec, 1")
            e(f"v_mov_b32 v{vt+4}, 0")
            e(f"s_not_b32 s80, s72")
            e(f"s_not_b32 s81, s74")
            e(f"v_mov_b32 v{vt}, s80")
            e(f"v_mov_b32 v{vt+1}, s72")
            e(f"v_mov_b32 v{vt+2}, s81")
            e(f"v_mov_b32 v{vt+3}, s74")
            for q in range(4):
                e(f"buffer_atomic_umax v{vt+q}, v{vt+4}, s[76:79], 0 offen offset:{16*self.kidx + 4*q}")
            e.label(f"L_dbg_skip{self.kidx}")
            return
        self()
        e("s_waitcnt lgkmcnt(0) vmcnt(0)")
        e("s_mov_b64 exec, 1")
        e(f"s_lshl_b32 s{s_tmp}, s2, 4")
        e(f"s_add_u32 s{s_tmp}, s{s_tmp}, s{s_wave}")
        e(f"s_lshl_b32 s{s_tmp}, s{s_tmp}, 7")
        e(f"s_add_u32 s{s_tmp}, s{s_tmp}, {STAMP_OFF + self.kidx * 0x80000}")
        e(f"v_mov_b32 v{vt+4}, 0")
        for i in range(0, self.n, 2):
            e(f"v_mov_b32 v{vt}, s{S_ST+2*i}")
            e(f"v_mov_b32 v{vt+1}, s{S_ST+2*i+1}")
            e(f"v_mov_b32 v{vt+2}, s{S_ST+2*i+2}")
            e(f"v_mov_b32 v{vt+3}, s{S_ST+2*i+3}")
            e(f"buffer_store_dwordx4 v[{vt}:{vt+3}], v{vt+4}, s[{ws_srd}:{ws_srd+3}], s{s_tmp} offen offset:{8*i}")


def k1(e, stamps):
    name = "proj_kernel"
    XN, RED = 0, 2304
    e(kernel_head(name))
    e.label(name)
    e("s_cmp_ge_u32 s2, 208")
    e("s_cbranch_scc1 L_k1_exit")
    st = St(e, stamps, 0)
    st()
    e(f"s_load_dwordx2 s[4:5], s[0:1], {KA_X}")
    e(f"s_load_dwordx2 s[6:7], s[0:1], {KA_WQ}")
    e(f"s_load_dwordx4 s[8:11], s[0:1], {KA_WG}")
    e(f"s_load_dwordx2 s[12:13], s[0:1], {KA_WS}")
    e("v_lshrrev_b32 v1, 6, v0")
    e("v_and_b32 v2, 63, v0")
    e("v_readfirstlane_b32 s16, v1")
    e("s_mov_b32 s14, 0")
    for lim in (52, 104, 156):
        e(f"s_cmp_ge_u32 s2, {lim}")
        e("s_addc_u32 s14, s14, 0")
    e("s_mul_i32 s15, s14, 52")
    e("s_sub_u32 s15, s2, s15")
    e("s_mov_b32 s40, 0xffff0000")
    e("v_mul_u32_u24 v5, 18, v2")
    e("v_mul_u32_u24 v6, 36, v2")
    e("s_waitcnt lgkmcnt(0)")
    st()
    srd(e, 24, 4, 1152)
    e("s_cmp_lg_u32 s16, 0")
    e("s_cbranch_scc1 L_k1_a")
    for i in range(9):
        e(f"buffer_load_ushort v{8+i}, v5, s[24:27], 0 offen offset:{2*i}")
    e.label("L_k1_a")
    e("s_mov_b32 s20, s6")
    e("s_mov_b32 s21, s7")
    e("s_mov_b32 s17, 8192")
    e("s_mov_b32 s19, 0")
    e("s_cmp_ge_u32 s15, 16")
    e("s_cselect_b32 s20, s8, s20")
    e("s_cselect_b32 s21, s9, s21")
    e("s_cselect_b32 s17, 9216, s17")
    e("s_cselect_b32 s19, 16, s19")
    e("s_cmp_ge_u32 s15, 34")
    e("s_cselect_b32 s20, s10, s20")
    e("s_cselect_b32 s21, s11, s21")
    e("s_cselect_b32 s19, 34, s19")
    e("s_sub_u32 s18, s15, s19")
    e("s_mul_i32 s22, s17, 576")
    e("s_mov_b32 s23, 0x20000")
    e("s_mul_i32 s32, s14, 144")
    e("s_lshl_b32 s33, s16, 4")
    e("s_add_u32 s44, s32, s33")
    e("s_mul_i32 s32, s44, s17")
    e("s_lshl_b32 s33, s18, 9")
    e("s_add_u32 s32, s32, s33")
    for i in range(1, 8):
        e(f"s_add_u32 s{32+i}, s{32+i-1}, s17")
    e("s_lshl_b32 s45, s17, 3")
    e("v_and_b32 v3, 31, v2")
    e("v_lshlrev_b32 v3, 4, v3")
    e("v_lshrrev_b32 v4, 5, v2")
    e("v_mul_lo_u32 v4, v4, s45")
    e("v_add_u32 v3, v3, v4")
    e("s_barrier")
    for i in range(8):
        e(f"buffer_load_dwordx4 v[{32+4*i}:{35+4*i}], v3, s[20:23], s{32+i} offen nt")
    srd(e, 28, 12, WS_BYTES)
    e("v_lshrrev_b32 v7, 5, v2")
    e("v_lshlrev_b32 v7, 5, v7")
    e("s_lshl_b32 s46, s44, 2")
    e("v_add_u32 v7, s46, v7")
    e("v_and_b32 v80, 31, v2")
    e("v_lshlrev_b32 v80, 5, v80")
    e("v_lshrrev_b32 v81, 5, v2")
    e("v_lshlrev_b32 v81, 4, v81")
    e("v_add_u32 v80, v80, v81")
    e("s_lshl_b32 s47, s16, 10")
    e(f"s_add_u32 s47, s47, {RED}")
    e("v_add_u32 v80, s47, v80")
    e("s_cmp_lg_u32 s16, 0")
    e("s_cbranch_scc1 L_k1_b")
    e("s_waitcnt vmcnt(8)")
    emit_ln(e, list(range(8, 17)), list(range(17, 24)) + [72], 41, 40, 6, XN)
    e("s_waitcnt lgkmcnt(0)")
    e.label("L_k1_b")
    st()
    e("s_barrier")
    e(f"ds_read_b128 v[24:27], v7 offset:{XN}")
    e(f"ds_read_b128 v[28:31], v7 offset:{XN+16}")
    for i in range(8):
        if i == 0:
            e("s_waitcnt lgkmcnt(0)")
            st()
            e("s_waitcnt vmcnt(7)")
            st()
        else:
            e(f"s_waitcnt vmcnt({7-i})")
        if i == 7:
            st()
        for j in range(4):
            d = 32 + 4 * i + j
            ta, tb = 72 + 2 * (j % 2), 73 + 2 * (j % 2)
            e(f"v_lshlrev_b32 v{ta}, 16, v{d}")
            e(f"v_and_b32 v{tb}, s40, v{d}")
            if i == 0:
                e(f"v_mul_f32 v{64+2*j}, v{24+i}, v{ta}")
                e(f"v_mul_f32 v{65+2*j}, v{24+i}, v{tb}")
            else:
                e(f"v_fmac_f32 v{64+2*j}, v{24+i}, v{ta}")
                e(f"v_fmac_f32 v{65+2*j}, v{24+i}, v{tb}")
    for j in range(4):
        e(f"v_permlane32_swap_b32 v{64+j}, v{68+j}")
    for j in range(4):
        e(f"v_add_f32 v{76+j}, v{64+j}, v{68+j}")
    e("ds_write_b128 v80, v[76:79]")
    e("s_waitcnt lgkmcnt(0)")
    e("s_barrier")
    st()
    e("s_cmp_lg_u32 s16, 0")
    e("s_cbranch_scc1 L_k1_end")
    e("v_lshlrev_b32 v1, 4, v2")
    for s in range(9):
        e(f"ds_read_b128 v[{32+4*s}:{35+4*s}], v1 offset:{RED + 1024*s}")
    e("s_mul_i32 s34, s14, %d" % NCOL1)
    e("s_lshl_b32 s35, s15, 8")
    e("s_add_u32 s34, s34, s35")
    e("s_lshl_b32 s34, s34, 2")
    if P1_OFF:
        e(f"s_add_u32 s34, s34, {P1_OFF}")
    for s in range(1, 9):
        e(f"s_waitcnt lgkmcnt({8-s})")
        for j in range(4):
            e(f"v_add_f32 v{32+j}, v{32+j}, v{32+4*s+j}")
    e("buffer_store_dwordx4 v[32:35], v1, s[28:31], s34 offen")
    e.label("L_k1_end")
    st.flush(28, 40, 16, 36)
    e.label("L_k1_exit")
    e("s_endpgm")
    e(kernel_desc(name, 84))
    return name, 208, 576, RED + 9 * 1024


def k2(e, stamps):
    name = "attn_kernel"
    QL, OACC, ML = 0, 512, 512 + 8192
    e(kernel_head(name))
    e.label(name)
    e("s_cmp_ge_u32 s2, 256")
    e("s_cbranch_scc1 L_k2_exit")
    st = St(e, stamps, 1)
    st()
    e(f"s_load_dwordx4 s[4:7], s[0:1], {KA_K}")
    e(f"s_load_dwordx2 s[8:9], s[0:1], {KA_WS}")
    e("v_lshrrev_b32 v1, 6, v0")
    e("v_and_b32 v2, 63, v0")
    e("v_readfirstlane_b32 s16, v1")
    e("s_lshr_b32 s14, s2, 4")
    e("s_and_b32 s15, s2, 15")
    e(f"s_mov_b32 s40, {C_SCALE}")
    e(f"s_mov_b32 s41, {C_LOG2E}")
    e("s_waitcnt lgkmcnt(0)")
    st()
    srd(e, 20, 4, 33554432)
    srd(e, 24, 6, 33554432)
    srd(e, 28, 8, WS_BYTES)
    e("s_cmp_eq_u32 s16, 0")
    e("s_cbranch_scc1 L_k2_helper")
    e("s_sub_u32 s17, s16, 1")
    e("s_lshl_b32 s32, s14, 21")
    e("s_lshl_b32 s33, s15, 15")
    e("s_lshl_b32 s34, s17, 12")
    e("s_add_u32 s32, s32, s33")
    e("s_add_u32 s32, s32, s34")
    e("s_add_u32 s32, s32, 0x180000")
    e("v_and_b32 v3, 15, v2")
    e("v_lshlrev_b32 v3, 8, v3")
    e("v_lshrrev_b32 v5, 4, v2")
    e("v_lshlrev_b32 v4, 4, v5")
    e("v_add_u32 v3, v3, v4")
    e("v_lshlrev_b32 v4, 4, v2")
    e("s_barrier")
    for i in range(4):
        e(f"buffer_load_dwordx4 v[{12+4*i}:{15+4*i}], v3, s[20:23], s32 offen offset:{64*i} nt")
    for i in range(4):
        e(f"buffer_load_dwordx4 v[{28+4*i}:{31+4*i}], v4, s[24:27], s32 offen offset:{1024*i} nt")
    e("v_and_b32 v70, 7, v2")
    e("v_and_b32 v71, 1, v70")
    e("v_lshlrev_b32 v71, 4, v71")
    e("v_mov_b32 v72, 0xffff")
    e("v_lshlrev_b32 v72, v71, v72")
    e("v_lshrrev_b32 v70, 1, v70")
    for k in range(4):
        e(f"v_cmp_eq_u32 vcc, {k}, v70")
        e(f"v_cndmask_b32 v{8+k}, 0, v72, vcc")
    e("v_bfe_u32 v6, v2, 3, 1")
    e("v_lshlrev_b32 v6, 6, v6")
    e("v_lshlrev_b32 v70, 2, v5")
    e("v_add_u32 v6, v6, v70")
    e("v_bfe_u32 v73, v2, 2, 1")
    e("v_lshlrev_b32 v73, 8, v73")
    e("v_lshlrev_b32 v70, 4, v5")
    e("v_add_u32 v73, v73, v70")
    e("v_lshrrev_b32 v7, 5, v2")
    e("v_lshlrev_b32 v7, 9, v7")
    e("v_and_b32 v70, 15, v2")
    e("v_lshlrev_b32 v70, 5, v70")
    e("v_add_u32 v7, v7, v70")
    e("v_bfe_u32 v70, v2, 4, 1")
    e("v_lshlrev_b32 v71, 4, v70")
    e("v_add_u32 v7, v7, v71")
    e("s_lshl_b32 s35, s17, 10")
    e(f"s_add_u32 s35, s35, {OACC}")
    e("v_add_u32 v7, s35, v7")
    e("v_lshlrev_b32 v69, 3, v70")
    e("s_lshl_b32 s35, s17, 4")
    e(f"s_add_u32 s35, s35, {ML}")
    e("v_add_u32 v69, s35, v69")
    st()
    e("s_barrier")
    st()
    for i in range(4):
        e(f"ds_read_b128 v[{44+4*i}:{47+4*i}], v73 offset:{QL + 64*i}")
    e("s_waitcnt vmcnt(4) lgkmcnt(0)")
    st()
    for i in range(4):
        c = "0" if i == 0 else "v[60:63]"
        e(f"v_mfma_f32_16x16x32_bf16 v[60:63], v[{44+4*i}:{47+4*i}], v[{12+4*i}:{15+4*i}], {c}")
    e("v_cvt_pk_bf16_f32 v70, v60, v60")
    e("v_lshlrev_b32 v70, 16, v70")
    e("v_mul_f32 v70, s40, v70")
    rb(e, 70, 71)
    e("v_mov_b32 v74, v70")
    row_allreduce(e, "v_max_f32", 74)
    e("v_sub_f32 v70, v70, v74")
    e("v_mul_f32 v70, s41, v70")
    e("v_exp_f32 v70, v70")
    e("v_mov_b32 v75, v70")
    row_allreduce(e, "v_add_f32", 75)
    e("v_cvt_pk_bf16_f32 v71, v70, v70")
    e("ds_write_b64 v69, v[74:75]")
    for i in range(4):
        e(f"ds_bpermute_b32 v{76+i}, v6, v71 offset:{16*i}")
    for i in range(4):
        e(f"s_waitcnt vmcnt({3-i}) lgkmcnt({3-i})")
        for k in range(4):
            e(f"v_and_b32 v{80+4*(i%2)+k}, v{8+k}, v{76+i}")
        c = "0" if i == 0 else "v[64:67]"
        a = 80 + 4 * (i % 2)
        e(f"v_mfma_f32_16x16x32_bf16 v[64:67], v[{a}:{a+3}], v[{28+4*i}:{31+4*i}], {c}")
    e("ds_write_b128 v7, v[64:67]")
    e("s_waitcnt lgkmcnt(0)")
    st()
    e("s_barrier")
    st()
    e.label("L_k2_comb")
    e("s_cmp_ge_u32 s16, 4")
    e("s_cbranch_scc1 L_k2_end")
    e("s_lshr_b32 s35, s16, 1")
    e("s_lshl_b32 s36, s35, 3")
    e(f"s_add_u32 s36, s36, {ML}")
    e("v_mov_b32 v3, s36")
    e("v_lshlrev_b32 v4, 2, v0")
    for w in range(8):
        e(f"ds_read_b64 v[{12+2*w}:{13+2*w}], v3 offset:{16*w}")
    for w in range(8):
        e(f"ds_read_b32 v{28+w}, v4 offset:{OACC + 1024*w}")
    e("s_lshl_b32 s37, s14, 1")
    e("s_add_u32 s37, s37, s35")
    e("s_lshl_b32 s37, s37, 4")
    e("s_add_u32 s37, s37, s15")
    e("s_lshl_b32 s38, s37, 9")
    e(f"s_add_u32 s38, s38, {PACC_OFF}")
    e("s_lshl_b32 s39, s37, 3")
    e(f"s_add_u32 s39, s39, {PML_OFF}")
    e("v_and_b32 v5, 127, v0")
    e("s_waitcnt lgkmcnt(8)")
    e("v_max3_f32 v40, v12, v14, v16")
    e("v_max3_f32 v40, v40, v18, v20")
    e("v_max3_f32 v40, v40, v22, v24")
    e("v_max_f32 v40, v40, v26")
    for w in range(8):
        e(f"v_sub_f32 v{44+w}, v{12+2*w}, v40")
    for w in range(8):
        e(f"v_mul_f32 v{44+w}, s41, v{44+w}")
    for w in range(8):
        e(f"v_exp_f32 v{44+w}, v{44+w}")
    e("v_mul_f32 v41, v44, v13")
    for w in range(1, 8):
        e(f"v_fmac_f32 v41, v{44+w}, v{13+2*w}")
    e("s_waitcnt lgkmcnt(0)")
    e("v_mul_f32 v42, v44, v28")
    for w in range(1, 8):
        e(f"v_fmac_f32 v42, v{44+w}, v{28+w}")
    e("v_lshlrev_b32 v6, 2, v5")
    e("buffer_store_dword v42, v6, s[28:31], s38 offen")
    e("v_cmp_eq_u32 vcc, 0, v5")
    e("s_and_saveexec_b64 s[50:51], vcc")
    e("s_cbranch_execz L_k2_end0")
    e("buffer_store_dwordx2 v[40:41], v5, s[28:31], s39 offen")
    e.label("L_k2_end0")
    e("s_mov_b64 exec, s[50:51]")
    e("s_branch L_k2_end")
    e.label("L_k2_helper")
    e("v_lshlrev_b32 v3, 4, v2")
    e("s_lshl_b32 s32, s14, 10")
    if P1_OFF:
        e(f"s_add_u32 s32, s32, {P1_OFF}")
    for ks in range(4):
        e(f"s_add_u32 s{33+ks}, s32, {ks * NCOL1 * 4}")
        e(f"buffer_load_dwordx4 v[{12+4*ks}:{15+4*ks}], v3, s[28:31], s{33+ks} offen")
    e("s_barrier")
    e("v_lshlrev_b32 v4, 3, v2")
    e("s_waitcnt vmcnt(2)")
    for j in range(4):
        e(f"v_add_f32 v{12+j}, v{12+j}, v{16+j}")
    e("s_waitcnt vmcnt(0)")
    for j in range(4):
        e(f"v_add_f32 v{20+j}, v{20+j}, v{24+j}")
    for j in range(4):
        e(f"v_add_f32 v{12+j}, v{12+j}, v{20+j}")
    e("v_cvt_pk_bf16_f32 v16, v12, v13")
    e("v_cvt_pk_bf16_f32 v17, v14, v15")
    e(f"ds_write_b64 v4, v[16:17] offset:{QL}")
    e("s_waitcnt lgkmcnt(0)")
    e("s_barrier")
    e("s_barrier")
    e("s_branch L_k2_comb")
    e.label("L_k2_end")
    st.flush(28, 44, 16, 36)
    e.label("L_k2_exit")
    e("s_endpgm")
    e(kernel_desc(name, 88))
    return name, 256, 576, ML + 128


def k3(e, stamps):
    name = "oproj_kernel"
    XV, RED = 0, 128
    e(kernel_head(name))
    e.label(name)
    e("s_cmp_ge_u32 s2, 272")
    e("s_cbranch_scc1 L_k3_exit")
    st = St(e, stamps, 2)
    st()
    e(f"s_load_dwordx2 s[4:5], s[0:1], {KA_WO}")
    e(f"s_load_dwordx2 s[6:7], s[0:1], {KA_WD}")
    e(f"s_load_dwordx2 s[8:9], s[0:1], {KA_WS}")
    e("v_lshrrev_b32 v1, 6, v0")
    e("v_and_b32 v2, 63, v0")
    e("v_readfirstlane_b32 s16, v1")
    e(f"s_mov_b32 s41, {C_LOG2E}")
    e("s_mov_b32 s43, 0xc2fc0000")
    e("s_mov_b32 s40, 0xffff0000")
    e("v_lshlrev_b32 v3, 4, v0")
    e("v_mul_u32_u24 v4, 911, v0")
    e("v_lshrrev_b32 v4, 16, v4")
    e("v_mul_u32_u24 v5, 72, v4")
    e("v_sub_u32 v5, v0, v5")
    e("s_waitcnt lgkmcnt(0)")
    st()
    srd(e, 28, 8, WS_BYTES)
    e("s_mov_b32 s20, s4")
    e("s_mov_b32 s21, s5")
    e("s_mov_b32 s22, 4718592")
    e("s_mov_b32 s15, s2")
    e("s_cmp_ge_u32 s2, 128")
    e("s_cselect_b32 s20, s6, s20")
    e("s_cselect_b32 s21, s7, s21")
    e("s_cselect_b32 s22, 5308416, s22")
    e("s_cselect_b32 s14, 128, 0")
    e("s_mov_b32 s23, 0x20000")
    e("s_sub_u32 s15, s2, s14")
    e("s_mul_i32 s32, s15, 36864")
    for n in range(1, 4):
        e(f"s_add_u32 s{32+n}, s32, {9216*n}")
    e("s_cmp_lg_u32 s16, 0")
    e("s_cbranch_scc1 L_k3_a")
    e("s_cmp_ge_u32 s2, 128")
    e("s_cbranch_scc1 L_k3_dload")
    e("s_lshr_b32 s36, s15, 2")
    e("s_and_b32 s37, s15, 3")
    e("v_and_b32 v6, 15, v2")
    e("v_lshrrev_b32 v7, 4, v2")
    e("v_lshlrev_b32 v8, 3, v6")
    e("s_lshl_b32 s38, s36, 7")
    e(f"s_add_u32 s38, s38, {PML_OFF}")
    e("v_lshlrev_b32 v9, 9, v6")
    e("v_lshlrev_b32 v10, 5, v7")
    e("v_add_u32 v9, v9, v10")
    e("s_lshl_b32 s39, s36, 13")
    e("s_lshl_b32 s42, s37, 7")
    e("s_add_u32 s39, s39, s42")
    e(f"s_add_u32 s39, s39, {PACC_OFF}")
    e("buffer_load_dwordx2 v[12:13], v8, s[28:31], s38 offen")
    e("buffer_load_dwordx4 v[16:19], v9, s[28:31], s39 offen")
    e("buffer_load_dwordx4 v[20:23], v9, s[28:31], s39 offen offset:16")
    e("s_branch L_k3_a")
    e.label("L_k3_dload")
    e("v_and_b32 v6, 31, v2")
    e("v_lshlrev_b32 v8, 2, v6")
    e("s_lshl_b32 s36, s15, 7")
    for ks in range(4):
        e(f"s_add_u32 s37, s36, {P1_OFF + (ks*NCOL1 + 4096)*4}")
        e(f"buffer_load_dword v{12+ks}, v8, s[28:31], s37 offen")
        e(f"s_add_u32 s38, s36, {P1_OFF + (ks*NCOL1 + 8704)*4}")
        e(f"buffer_load_dword v{16+ks}, v8, s[28:31], s38 offen")
    e.label("L_k3_a")
    e("s_barrier")
    for n in range(4):
        e(f"buffer_load_dwordx4 v[{32+4*n}:{35+4*n}], v3, s[20:23], s{32+n} offen nt")
    e("s_cmp_lg_u32 s16, 0")
    e("s_cbranch_scc1 L_k3_b")
    e("s_cmp_ge_u32 s2, 128")
    e("s_cbranch_scc1 L_k3_dcomp")
    e("s_waitcnt vmcnt(6)")
    e("v_mov_b32 v14, v12")
    row_allreduce(e, "v_max_f32", 14)
    e("v_sub_f32 v12, v12, v14")
    e("v_mul_f32 v12, s41, v12")
    e("v_exp_f32 v12, v12")
    e("v_mul_f32 v13, v12, v13")
    row_allreduce(e, "v_add_f32", 13)
    e("v_rcp_f32 v14, v13")
    e("v_fma_f32 v15, -v13, v14, 1.0")
    e("v_fma_f32 v14, v15, v14, v14")
    e("v_mul_f32 v12, v12, v14")
    e("s_waitcnt vmcnt(4)")
    for k in range(8):
        e(f"v_mul_f32 v{16+k}, v12, v{16+k}")
    for sh in (8, 4, 2, 1):
        for k in range(8):
            e(f"v_add_f32_dpp v{16+k}, v{16+k}, v{16+k} row_ror:{sh} row_mask:0xf bank_mask:0xf")
    for k in range(0, 8, 2):
        rb2(e, 16 + k, 17 + k, 24, 40)
    e("v_lshlrev_b32 v10, 2, v7")
    for k in range(8):
        e(f"ds_write_b32 v10, v{16+k} offset:{XV + 16*k}")
    e("s_branch L_k3_b0")
    e.label("L_k3_dcomp")
    e("s_waitcnt vmcnt(4)")
    e("v_add_f32 v12, v12, v13")
    e("v_add_f32 v14, v14, v15")
    e("v_add_f32 v16, v16, v17")
    e("v_add_f32 v18, v18, v19")
    e("v_add_f32 v12, v12, v14")
    e("v_add_f32 v16, v16, v18")
    rb2(e, 12, 16, 24, 40)
    e("v_mul_f32 v13, s41, v12")
    e("v_max_f32 v13, s43, v13")
    e("v_exp_f32 v13, -v13")
    e("v_add_f32 v13, 1.0, v13")
    e("v_rcp_f32 v14, v13")
    e("v_fma_f32 v15, -v13, v14, 1.0")
    e("v_fma_f32 v14, v15, v14, v14")
    e("v_mul_f32 v12, v12, v14")
    rb(e, 12, 24)
    e("v_mul_f32 v12, v12, v16")
    rb(e, 12, 24)
    e("v_and_b32 v10, 7, v6")
    e("v_lshlrev_b32 v10, 4, v10")
    e("v_lshrrev_b32 v11, 3, v6")
    e("v_lshlrev_b32 v11, 2, v11")
    e("v_add_u32 v10, v10, v11")
    e(f"ds_write_b32 v10, v12 offset:{XV}")
    e.label("L_k3_b0")
    e("s_waitcnt lgkmcnt(0)")
    e.label("L_k3_b")
    e("s_barrier")
    e.label("L_k3_main")
    st()
    e("v_lshlrev_b32 v6, 4, v4")
    e(f"ds_read_b128 v[24:27], v6 offset:{XV}")
    e("v_mul_u32_u24 v8, 2304, v4")
    e("v_lshlrev_b32 v9, 5, v5")
    e("v_add_u32 v8, v8, v9")
    for n in range(4):
        if n == 0:
            e("s_waitcnt vmcnt(3) lgkmcnt(0)")
        else:
            e(f"s_waitcnt vmcnt({3-n})")
        for j in range(4):
            d = 32 + 4 * n + j
            ta, tb = 56 + 2 * (j % 2), 57 + 2 * (j % 2)
            e(f"v_lshlrev_b32 v{ta}, 16, v{d}")
            e(f"v_and_b32 v{tb}, s40, v{d}")
            if n == 0:
                e(f"v_mul_f32 v{48+2*j}, v{24+n}, v{ta}")
                e(f"v_mul_f32 v{49+2*j}, v{24+n}, v{tb}")
            else:
                e(f"v_fmac_f32 v{48+2*j}, v{24+n}, v{ta}")
                e(f"v_fmac_f32 v{49+2*j}, v{24+n}, v{tb}")
    e(f"ds_write_b128 v8, v[48:51] offset:{RED}")
    e(f"ds_write_b128 v8, v[52:55] offset:{RED+16}")
    e("s_waitcnt lgkmcnt(0)")
    st()
    e("s_barrier")
    st()
    e("v_lshlrev_b32 v6, 2, v0")
    for r in range(8):
        e(f"ds_read_b32 v{32+r}, v6 offset:{RED + 2304*r}")
    e("s_mul_i32 s36, s2, 2304")
    e(f"s_add_u32 s36, s36, {PART_OFF}")
    for r in range(1, 8):
        e(f"s_waitcnt lgkmcnt({7-r})")
        e(f"v_add_f32 v32, v32, v{32+r}")
    e("buffer_store_dword v32, v6, s[28:31], s36 offen")
    e.label("L_k3_end")
    st.flush(28, 44, 16, 36)
    e.label("L_k3_exit")
    e("s_endpgm")
    e(kernel_desc(name, 64))
    return name, 272, 576, RED + 8 * 2304


def k4(e, stamps):
    name = "final_kernel"
    RS, RF = 0, 4096
    e(kernel_head(name))
    e.label(name)
    e("s_cmp_ge_u32 s2, 9")
    e("s_cbranch_scc1 L_k4_exit")
    st = St(e, stamps, 3)
    st()
    e(f"s_load_dwordx2 s[4:5], s[0:1], {KA_X}")
    e(f"s_load_dwordx2 s[6:7], s[0:1], {KA_OUT}")
    e(f"s_load_dwordx2 s[8:9], s[0:1], {KA_WS}")
    e(f"s_mov_b32 s41, {C_LOG2E}")
    e("s_mov_b32 s42, 0xc2fc0000")
    e("s_mov_b32 s40, 0xffff0000")
    e("v_and_b32 v2, 15, v0")
    e("v_lshrrev_b32 v3, 4, v0")
    e("v_mul_u32_u24 v4, 2304, v3")
    e("v_lshlrev_b32 v5, 4, v2")
    e("v_add_u32 v4, v4, v5")
    e("s_lshl_b32 s32, s2, 8")
    e(f"s_add_u32 s32, s32, {PART_OFF}")
    e("s_waitcnt lgkmcnt(0)")
    st()
    e("v_lshrrev_b32 v1, 6, v0")
    e("v_readfirstlane_b32 s16, v1")
    srd(e, 20, 4, 1152)
    srd(e, 24, 6, 1152)
    srd(e, 28, 8, WS_BYTES)
    for n in range(17):
        e(f"s_add_u32 s{44+n}, s32, {n*16*2304}")
        e(f"buffer_load_dwordx4 v[{8+4*n}:{11+4*n}], v4, s[28:31], s{44+n} offen")
    e("v_lshlrev_b32 v6, 1, v0")
    e("s_lshl_b32 s33, s2, 7")
    e("buffer_load_ushort v80, v6, s[20:23], s33 offen")
    for n in range(1, 8):
        e(f"s_waitcnt vmcnt({17-n})")
        for j in range(4):
            e(f"v_add_f32 v{8+j}, v{8+j}, v{8+4*n+j}")
    for n in range(9, 17):
        e(f"s_waitcnt vmcnt({17-n})")
        for j in range(4):
            e(f"v_add_f32 v{40+j}, v{40+j}, v{8+4*n+j}")
    e("v_lshlrev_b32 v5, 4, v0")
    e(f"ds_write_b128 v5, v[8:11] offset:{RS}")
    e(f"ds_write_b128 v5, v[40:43] offset:{RF}")
    e("s_waitcnt lgkmcnt(0)")
    st()
    e("s_barrier")
    st()
    e("s_cmp_lg_u32 s16, 0")
    e("s_cbranch_scc1 L_k4_end")
    e("v_lshlrev_b32 v5, 2, v0")
    for p in range(16):
        e(f"ds_read_b32 v{8+p}, v5 offset:{RS + 256*p}")
    for p in range(16):
        e(f"ds_read_b32 v{40+p}, v5 offset:{RF + 256*p}")
    for p in range(1, 16):
        e(f"s_waitcnt lgkmcnt({min(15, 31-p)})")
        e(f"v_add_f32 v8, v8, v{8+p}")
    for p in range(1, 16):
        e(f"s_waitcnt lgkmcnt({15-p})")
        e(f"v_add_f32 v40, v40, v{40+p}")
    e("s_waitcnt vmcnt(0)")
    e("v_lshlrev_b32 v80, 16, v80")
    rb2(e, 8, 40, 9, 40)
    e("v_mul_f32 v10, s41, v40")
    e("v_max_f32 v10, s42, v10")
    e("v_exp_f32 v10, -v10")
    e("v_add_f32 v10, 1.0, v10")
    e("v_rcp_f32 v11, v10")
    e("v_fma_f32 v12, -v10, v11, 1.0")
    e("v_fma_f32 v11, v12, v11, v11")
    e("v_mul_f32 v40, v40, v11")
    rb(e, 40, 9)
    e("v_mul_f32 v8, v8, v40")
    rb(e, 8, 9)
    e("v_add_f32 v8, v80, v8")
    e("v_cvt_pk_bf16_f32 v8, v8, v8")
    e("buffer_store_short v8, v6, s[24:27], s33 offen")
    e.label("L_k4_end")
    st.flush(28, 84, 16, 36)
    e.label("L_k4_exit")
    e("s_endpgm")
    e(kernel_desc(name, 92))
    return name, 9, 256, 8192


def build(stamps=False):
    body = []
    launches = []
    for fn in (k1, k2, k3, k4):
        e = Emitter()
        name, grid, block, lds = fn(e, stamps)
        body.append(e.text())
        launches.append(f"; @launch kernel={name} grid=({grid},1,1) block=({block},1,1) lds={lds}")
    out = HEADER + "\n".join(launches) + "\n" + '.amdgcn_target "amdgcn-amd-amdhsa--gfx950"\n' + "\n".join(body)
    return out


if __name__ == "__main__":
    stamps = "--stamps" in sys.argv
    if "--dbg" in sys.argv:
        stamps = "dbg"
    path = [a for a in sys.argv[1:] if not a.startswith("--")][0]
    open(path, "w").write(build(stamps))
```

```python
import sys
from asmgen import Emitter
from common import *

P1_OFF = 0
PACC_OFF = 0x40000
PML_OFF = 0x80000
PART_OFF = 0x100000
STAMP_OFF = 0x400000
WS_BYTES = 268435456
NCOL1 = 13312


NSTAMP = 12
S_ST = 72


class St:
    def __init__(self, e, on, kidx):
        self.e, self.on, self.kidx = e, on, kidx
        self.n = 0

    def __call__(self):
        if not self.on:
            return
        if self.on == "dbg" and self.n >= 1:
            return
        i = self.n
        self.n += 1
        assert i < NSTAMP
        self.e(f"s_memrealtime s[{S_ST+2*i}:{S_ST+2*i+1}]")

    def flush(self, ws_srd, vt, s_wave, s_tmp):
        if not self.on:
            return
        e = self.e
        if self.on == "dbg":
            DBGA = 0x300000
            k = self.kidx
            e(f"s_memrealtime s[74:75]")
            e(f"s_load_dwordx2 s[76:77], s[0:1], {KA_DBG}")
            e("s_waitcnt lgkmcnt(0) vmcnt(0)")
            e(f"s_cmp_lg_u32 s{s_wave}, 0")
            e(f"s_cbranch_scc1 L_dbg_skip{k}")
            e("s_mov_b64 exec, -1")
            e(f"v_mov_b32 v{vt}, s72")
            e(f"v_mov_b32 v{vt+1}, s74")
            if k < 3:
                e("s_and_b32 s78, s2, 15")
                e("s_lshl_b32 s78, s78, 3")
                e(f"s_add_u32 s78, s78, {DBGA + k*128}")
                e(f"v_mov_b32 v{vt+4}, 0")
                e("s_mov_b64 exec, 1")
                e(f"buffer_store_dwordx2 v[{vt}:{vt+1}], v{vt+4}, s[{ws_srd}:{ws_srd+3}], s78 offen")
            else:
                e("s_cmp_lg_u32 s2, 0")
                e(f"s_cbranch_scc1 L_dbg_skip{k}")
                e("s_mov_b32 s78, 256")
                e("s_mov_b32 s79, 0x20000")
                e(f"v_mbcnt_lo_u32_b32 v{vt+4}, -1, 0")
                e(f"v_mbcnt_hi_u32_b32 v{vt+4}, -1, v{vt+4}")
                e(f"v_lshlrev_b32 v{vt+5}, 3, v{vt+4}")
                e(f"s_mov_b32 s80, {DBGA}")
                e(f"buffer_load_dwordx2 v[{vt+2}:{vt+3}], v{vt+5}, s[{ws_srd}:{ws_srd+3}], s80 offen")
                e("s_waitcnt vmcnt(0)")
                e(f"v_cmp_gt_u32 vcc, 48, v{vt+4}")
                e(f"v_cndmask_b32 v{vt+2}, v{vt}, v{vt+2}, vcc")
                e(f"v_cndmask_b32 v{vt+3}, v{vt+1}, v{vt+3}, vcc")
                for q, (src, op) in enumerate(((2, "v_min_u32"), (2, "v_max_u32"), (3, "v_min_u32"), (3, "v_max_u32"))):
                    e(f"v_mov_b32 v{vt+6+q}, v{vt+src}")
                    for sh in (8, 4, 2, 1):
                        e(f"{op}_dpp v{vt+6+q}, v{vt+6+q}, v{vt+6+q} row_ror:{sh} row_mask:0xf bank_mask:0xf")
                e(f"v_and_b32 v{vt+5}, 15, v{vt+4}")
                e(f"v_cmp_eq_u32 vcc, 0, v{vt+5}")
                e("s_and_saveexec_b64 s[82:83], vcc")
                e(f"buffer_store_dwordx4 v[{vt+6}:{vt+9}], v{vt+4}, s[76:79], 0 offen")
            e.label(f"L_dbg_skip{k}")
            return
        self()
        e("s_waitcnt lgkmcnt(0) vmcnt(0)")
        e("s_mov_b64 exec, 1")
        e(f"s_lshl_b32 s{s_tmp}, s2, 4")
        e(f"s_add_u32 s{s_tmp}, s{s_tmp}, s{s_wave}")
        e(f"s_lshl_b32 s{s_tmp}, s{s_tmp}, 7")
        e(f"s_add_u32 s{s_tmp}, s{s_tmp}, {STAMP_OFF + self.kidx * 0x80000}")
        e(f"v_mov_b32 v{vt+4}, 0")
        for i in range(0, self.n, 2):
            e(f"v_mov_b32 v{vt}, s{S_ST+2*i}")
            e(f"v_mov_b32 v{vt+1}, s{S_ST+2*i+1}")
            e(f"v_mov_b32 v{vt+2}, s{S_ST+2*i+2}")
            e(f"v_mov_b32 v{vt+3}, s{S_ST+2*i+3}")
            e(f"buffer_store_dwordx4 v[{vt}:{vt+3}], v{vt+4}, s[{ws_srd}:{ws_srd+3}], s{s_tmp} offen offset:{8*i}")


def k1(e, stamps):
    name = "proj_kernel"
    XN, RED = 0, 2304
    e(kernel_head(name))
    e.label(name)
    e("s_cmp_ge_u32 s2, 208")
    e("s_cbranch_scc1 L_k1_exit")
    st = St(e, stamps, 0)
    st()
    e(f"s_load_dwordx2 s[4:5], s[0:1], {KA_X}")
    e(f"s_load_dwordx2 s[6:7], s[0:1], {KA_WQ}")
    e(f"s_load_dwordx4 s[8:11], s[0:1], {KA_WG}")
    e(f"s_load_dwordx2 s[12:13], s[0:1], {KA_WS}")
    e("v_lshrrev_b32 v1, 6, v0")
    e("v_and_b32 v2, 63, v0")
    e("v_readfirstlane_b32 s16, v1")
    e("s_mov_b32 s14, 0")
    for lim in (52, 104, 156):
        e(f"s_cmp_ge_u32 s2, {lim}")
        e("s_addc_u32 s14, s14, 0")
    e("s_mul_i32 s15, s14, 52")
    e("s_sub_u32 s15, s2, s15")
    e("s_mov_b32 s40, 0xffff0000")
    e("v_mul_u32_u24 v5, 18, v2")
    e("v_mul_u32_u24 v6, 36, v2")
    e("s_waitcnt lgkmcnt(0)")
    st()
    srd(e, 24, 4, 1152)
    e("s_cmp_lg_u32 s16, 0")
    e("s_cbranch_scc1 L_k1_a")
    for i in range(9):
        e(f"buffer_load_ushort v{8+i}, v5, s[24:27], 0 offen offset:{2*i}")
    e.label("L_k1_a")
    e("s_mov_b32 s20, s6")
    e("s_mov_b32 s21, s7")
    e("s_mov_b32 s17, 8192")
    e("s_mov_b32 s19, 0")
    e("s_cmp_ge_u32 s15, 16")
    e("s_cselect_b32 s20, s8, s20")
    e("s_cselect_b32 s21, s9, s21")
    e("s_cselect_b32 s17, 9216, s17")
    e("s_cselect_b32 s19, 16, s19")
    e("s_cmp_ge_u32 s15, 34")
    e("s_cselect_b32 s20, s10, s20")
    e("s_cselect_b32 s21, s11, s21")
    e("s_cselect_b32 s19, 34, s19")
    e("s_sub_u32 s18, s15, s19")
    e("s_mul_i32 s22, s17, 576")
    e("s_mov_b32 s23, 0x20000")
    e("s_mul_i32 s32, s14, 144")
    e("s_lshl_b32 s33, s16, 4")
    e("s_add_u32 s44, s32, s33")
    e("s_mul_i32 s32, s44, s17")
    e("s_lshl_b32 s33, s18, 9")
    e("s_add_u32 s32, s32, s33")
    for i in range(1, 8):
        e(f"s_add_u32 s{32+i}, s{32+i-1}, s17")
    e("s_lshl_b32 s45, s17, 3")
    e("v_and_b32 v3, 31, v2")
    e("v_lshlrev_b32 v3, 4, v3")
    e("v_lshrrev_b32 v4, 5, v2")
    e("v_mul_lo_u32 v4, v4, s45")
    e("v_add_u32 v3, v3, v4")
    e("s_barrier")
    for i in range(8):
        e(f"buffer_load_dwordx4 v[{32+4*i}:{35+4*i}], v3, s[20:23], s{32+i} offen nt")
    srd(e, 28, 12, WS_BYTES)
    e("v_lshrrev_b32 v7, 5, v2")
    e("v_lshlrev_b32 v7, 5, v7")
    e("s_lshl_b32 s46, s44, 2")
    e("v_add_u32 v7, s46, v7")
    e("v_and_b32 v80, 31, v2")
    e("v_lshlrev_b32 v80, 5, v80")
    e("v_lshrrev_b32 v81, 5, v2")
    e("v_lshlrev_b32 v81, 4, v81")
    e("v_add_u32 v80, v80, v81")
    e("s_lshl_b32 s47, s16, 10")
    e(f"s_add_u32 s47, s47, {RED}")
    e("v_add_u32 v80, s47, v80")
    e("s_cmp_lg_u32 s16, 0")
    e("s_cbranch_scc1 L_k1_b")
    e("s_waitcnt vmcnt(8)")
    emit_ln(e, list(range(8, 17)), list(range(17, 24)) + [72], 41, 40, 6, XN)
    e("s_waitcnt lgkmcnt(0)")
    e.label("L_k1_b")
    st()
    e("s_barrier")
    e(f"ds_read_b128 v[24:27], v7 offset:{XN}")
    e(f"ds_read_b128 v[28:31], v7 offset:{XN+16}")
    for i in range(8):
        if i == 0:
            e("s_waitcnt lgkmcnt(0)")
            st()
            e("s_waitcnt vmcnt(7)")
            st()
        else:
            e(f"s_waitcnt vmcnt({7-i})")
        if i == 7:
            st()
        for j in range(4):
            d = 32 + 4 * i + j
            ta, tb = 72 + 2 * (j % 2), 73 + 2 * (j % 2)
            e(f"v_lshlrev_b32 v{ta}, 16, v{d}")
            e(f"v_and_b32 v{tb}, s40, v{d}")
            if i == 0:
                e(f"v_mul_f32 v{64+2*j}, v{24+i}, v{ta}")
                e(f"v_mul_f32 v{65+2*j}, v{24+i}, v{tb}")
            else:
                e(f"v_fmac_f32 v{64+2*j}, v{24+i}, v{ta}")
                e(f"v_fmac_f32 v{65+2*j}, v{24+i}, v{tb}")
    for j in range(4):
        e(f"v_permlane32_swap_b32 v{64+j}, v{68+j}")
    for j in range(4):
        e(f"v_add_f32 v{76+j}, v{64+j}, v{68+j}")
    e("ds_write_b128 v80, v[76:79]")
    e("s_waitcnt lgkmcnt(0)")
    e("s_barrier")
    st()
    e("s_cmp_lg_u32 s16, 0")
    e("s_cbranch_scc1 L_k1_end")
    e("v_lshlrev_b32 v1, 4, v2")
    for s in range(9):
        e(f"ds_read_b128 v[{32+4*s}:{35+4*s}], v1 offset:{RED + 1024*s}")
    e("s_mul_i32 s34, s14, %d" % NCOL1)
    e("s_lshl_b32 s35, s15, 8")
    e("s_add_u32 s34, s34, s35")
    e("s_lshl_b32 s34, s34, 2")
    if P1_OFF:
        e(f"s_add_u32 s34, s34, {P1_OFF}")
    for s in range(1, 9):
        e(f"s_waitcnt lgkmcnt({8-s})")
        for j in range(4):
            e(f"v_add_f32 v{32+j}, v{32+j}, v{32+4*s+j}")
    e("buffer_store_dwordx4 v[32:35], v1, s[28:31], s34 offen")
    e.label("L_k1_end")
    st.flush(28, 40, 16, 36)
    e.label("L_k1_exit")
    e("s_endpgm")
    e(kernel_desc(name, 84))
    return name, 208, 576, RED + 9 * 1024


def k2(e, stamps):
    name = "attn_kernel"
    QL, OACC, ML = 0, 512, 512 + 8192
    e(kernel_head(name))
    e.label(name)
    e("s_cmp_ge_u32 s2, 256")
    e("s_cbranch_scc1 L_k2_exit")
    st = St(e, stamps, 1)
    st()
    e(f"s_load_dwordx4 s[4:7], s[0:1], {KA_K}")
    e(f"s_load_dwordx2 s[8:9], s[0:1], {KA_WS}")
    e("v_lshrrev_b32 v1, 6, v0")
    e("v_and_b32 v2, 63, v0")
    e("v_readfirstlane_b32 s16, v1")
    e("s_lshr_b32 s14, s2, 4")
    e("s_and_b32 s15, s2, 15")
    e(f"s_mov_b32 s40, {C_SCALE}")
    e(f"s_mov_b32 s41, {C_LOG2E}")
    e("s_waitcnt lgkmcnt(0)")
    st()
    srd(e, 20, 4, 33554432)
    srd(e, 24, 6, 33554432)
    srd(e, 28, 8, WS_BYTES)
    e("s_cmp_eq_u32 s16, 0")
    e("s_cbranch_scc1 L_k2_helper")
    e("s_sub_u32 s17, s16, 1")
    e("s_lshl_b32 s32, s14, 21")
    e("s_lshl_b32 s33, s15, 15")
    e("s_lshl_b32 s34, s17, 12")
    e("s_add_u32 s32, s32, s33")
    e("s_add_u32 s32, s32, s34")
    e("s_add_u32 s32, s32, 0x180000")
    e("v_and_b32 v3, 15, v2")
    e("v_lshlrev_b32 v3, 8, v3")
    e("v_lshrrev_b32 v5, 4, v2")
    e("v_lshlrev_b32 v4, 4, v5")
    e("v_add_u32 v3, v3, v4")
    e("v_lshlrev_b32 v4, 4, v2")
    e("s_barrier")
    for i in range(4):
        e(f"buffer_load_dwordx4 v[{12+4*i}:{15+4*i}], v3, s[20:23], s32 offen offset:{64*i} nt")
    for i in range(4):
        e(f"buffer_load_dwordx4 v[{28+4*i}:{31+4*i}], v4, s[24:27], s32 offen offset:{1024*i} nt")
    e("v_and_b32 v70, 7, v2")
    e("v_and_b32 v71, 1, v70")
    e("v_lshlrev_b32 v71, 4, v71")
    e("v_mov_b32 v72, 0xffff")
    e("v_lshlrev_b32 v72, v71, v72")
    e("v_lshrrev_b32 v70, 1, v70")
    for k in range(4):
        e(f"v_cmp_eq_u32 vcc, {k}, v70")
        e(f"v_cndmask_b32 v{8+k}, 0, v72, vcc")
    e("v_bfe_u32 v6, v2, 3, 1")
    e("v_lshlrev_b32 v6, 6, v6")
    e("v_lshlrev_b32 v70, 2, v5")
    e("v_add_u32 v6, v6, v70")
    e("v_bfe_u32 v73, v2, 2, 1")
    e("v_lshlrev_b32 v73, 8, v73")
    e("v_lshlrev_b32 v70, 4, v5")
    e("v_add_u32 v73, v73, v70")
    e("v_lshrrev_b32 v7, 5, v2")
    e("v_lshlrev_b32 v7, 9, v7")
    e("v_and_b32 v70, 15, v2")
    e("v_lshlrev_b32 v70, 5, v70")
    e("v_add_u32 v7, v7, v70")
    e("v_bfe_u32 v70, v2, 4, 1")
    e("v_lshlrev_b32 v71, 4, v70")
    e("v_add_u32 v7, v7, v71")
    e("s_lshl_b32 s35, s17, 10")
    e(f"s_add_u32 s35, s35, {OACC}")
    e("v_add_u32 v7, s35, v7")
    e("v_lshlrev_b32 v69, 3, v70")
    e("s_lshl_b32 s35, s17, 4")
    e(f"s_add_u32 s35, s35, {ML}")
    e("v_add_u32 v69, s35, v69")
    st()
    e("s_barrier")
    st()
    for i in range(4):
        e(f"ds_read_b128 v[{44+4*i}:{47+4*i}], v73 offset:{QL + 64*i}")
    e("s_waitcnt vmcnt(4) lgkmcnt(0)")
    st()
    for i in range(4):
        c = "0" if i == 0 else "v[60:63]"
        e(f"v_mfma_f32_16x16x32_bf16 v[60:63], v[{44+4*i}:{47+4*i}], v[{12+4*i}:{15+4*i}], {c}")
    e("v_cvt_pk_bf16_f32 v70, v60, v60")
    e("v_lshlrev_b32 v70, 16, v70")
    e("v_mul_f32 v70, s40, v70")
    rb(e, 70, 71)
    e("v_mov_b32 v74, v70")
    row_allreduce(e, "v_max_f32", 74)
    e("v_sub_f32 v70, v70, v74")
    e("v_mul_f32 v70, s41, v70")
    e("v_exp_f32 v70, v70")
    e("v_mov_b32 v75, v70")
    row_allreduce(e, "v_add_f32", 75)
    e("v_cvt_pk_bf16_f32 v71, v70, v70")
    e("ds_write_b64 v69, v[74:75]")
    for i in range(4):
        e(f"ds_bpermute_b32 v{76+i}, v6, v71 offset:{16*i}")
    for i in range(4):
        e(f"s_waitcnt vmcnt({3-i}) lgkmcnt({3-i})")
        for k in range(4):
            e(f"v_and_b32 v{80+4*(i%2)+k}, v{8+k}, v{76+i}")
        c = "0" if i == 0 else "v[64:67]"
        a = 80 + 4 * (i % 2)
        e(f"v_mfma_f32_16x16x32_bf16 v[64:67], v[{a}:{a+3}], v[{28+4*i}:{31+4*i}], {c}")
    e("ds_write_b128 v7, v[64:67]")
    e("s_waitcnt lgkmcnt(0)")
    st()
    e("s_barrier")
    st()
    e.label("L_k2_comb")
    e("s_cmp_ge_u32 s16, 4")
    e("s_cbranch_scc1 L_k2_end")
    e("s_lshr_b32 s35, s16, 1")
    e("s_lshl_b32 s36, s35, 3")
    e(f"s_add_u32 s36, s36, {ML}")
    e("v_mov_b32 v3, s36")
    e("v_lshlrev_b32 v4, 2, v0")
    for w in range(8):
        e(f"ds_read_b64 v[{12+2*w}:{13+2*w}], v3 offset:{16*w}")
    for w in range(8):
        e(f"ds_read_b32 v{28+w}, v4 offset:{OACC + 1024*w}")
    e("s_lshl_b32 s37, s14, 1")
    e("s_add_u32 s37, s37, s35")
    e("s_lshl_b32 s37, s37, 4")
    e("s_add_u32 s37, s37, s15")
    e("s_lshl_b32 s38, s37, 9")
    e(f"s_add_u32 s38, s38, {PACC_OFF}")
    e("s_lshl_b32 s39, s37, 3")
    e(f"s_add_u32 s39, s39, {PML_OFF}")
    e("v_and_b32 v5, 127, v0")
    e("s_waitcnt lgkmcnt(8)")
    e("v_max3_f32 v40, v12, v14, v16")
    e("v_max3_f32 v40, v40, v18, v20")
    e("v_max3_f32 v40, v40, v22, v24")
    e("v_max_f32 v40, v40, v26")
    for w in range(8):
        e(f"v_sub_f32 v{44+w}, v{12+2*w}, v40")
    for w in range(8):
        e(f"v_mul_f32 v{44+w}, s41, v{44+w}")
    for w in range(8):
        e(f"v_exp_f32 v{44+w}, v{44+w}")
    e("v_mul_f32 v41, v44, v13")
    for w in range(1, 8):
        e(f"v_fmac_f32 v41, v{44+w}, v{13+2*w}")
    e("s_waitcnt lgkmcnt(0)")
    e("v_mul_f32 v42, v44, v28")
    for w in range(1, 8):
        e(f"v_fmac_f32 v42, v{44+w}, v{28+w}")
    e("v_lshlrev_b32 v6, 2, v5")
    e("buffer_store_dword v42, v6, s[28:31], s38 offen")
    e("v_cmp_eq_u32 vcc, 0, v5")
    e("s_and_saveexec_b64 s[50:51], vcc")
    e("s_cbranch_execz L_k2_end0")
    e("buffer_store_dwordx2 v[40:41], v5, s[28:31], s39 offen")
    e.label("L_k2_end0")
    e("s_mov_b64 exec, s[50:51]")
    e("s_branch L_k2_end")
    e.label("L_k2_helper")
    e("v_lshlrev_b32 v3, 4, v2")
    e("s_lshl_b32 s32, s14, 10")
    if P1_OFF:
        e(f"s_add_u32 s32, s32, {P1_OFF}")
    for ks in range(4):
        e(f"s_add_u32 s{33+ks}, s32, {ks * NCOL1 * 4}")
        e(f"buffer_load_dwordx4 v[{12+4*ks}:{15+4*ks}], v3, s[28:31], s{33+ks} offen")
    e("s_barrier")
    e("v_lshlrev_b32 v4, 3, v2")
    e("s_waitcnt vmcnt(2)")
    for j in range(4):
        e(f"v_add_f32 v{12+j}, v{12+j}, v{16+j}")
    e("s_waitcnt vmcnt(0)")
    for j in range(4):
        e(f"v_add_f32 v{20+j}, v{20+j}, v{24+j}")
    for j in range(4):
        e(f"v_add_f32 v{12+j}, v{12+j}, v{20+j}")
    e("v_cvt_pk_bf16_f32 v16, v12, v13")
    e("v_cvt_pk_bf16_f32 v17, v14, v15")
    e(f"ds_write_b64 v4, v[16:17] offset:{QL}")
    e("s_waitcnt lgkmcnt(0)")
    e("s_barrier")
    e("s_barrier")
    e("s_branch L_k2_comb")
    e.label("L_k2_end")
    st.flush(28, 44, 16, 36)
    e.label("L_k2_exit")
    e("s_endpgm")
    e(kernel_desc(name, 88))
    return name, 256, 576, ML + 128


def k3(e, stamps):
    name = "oproj_kernel"
    XV, RED = 0, 128
    e(kernel_head(name))
    e.label(name)
    e("s_cmp_ge_u32 s2, 272")
    e("s_cbranch_scc1 L_k3_exit")
    st = St(e, stamps, 2)
    st()
    e(f"s_load_dwordx2 s[4:5], s[0:1], {KA_WO}")
    e(f"s_load_dwordx2 s[6:7], s[0:1], {KA_WD}")
    e(f"s_load_dwordx2 s[8:9], s[0:1], {KA_WS}")
    e("v_lshrrev_b32 v1, 6, v0")
    e("v_and_b32 v2, 63, v0")
    e("v_readfirstlane_b32 s16, v1")
    e(f"s_mov_b32 s41, {C_LOG2E}")
    e("s_mov_b32 s43, 0xc2fc0000")
    e("s_mov_b32 s40, 0xffff0000")
    e("v_lshlrev_b32 v3, 4, v0")
    e("v_mul_u32_u24 v4, 911, v0")
    e("v_lshrrev_b32 v4, 16, v4")
    e("v_mul_u32_u24 v5, 72, v4")
    e("v_sub_u32 v5, v0, v5")
    e("s_waitcnt lgkmcnt(0)")
    st()
    srd(e, 28, 8, WS_BYTES)
    e("s_mov_b32 s20, s4")
    e("s_mov_b32 s21, s5")
    e("s_mov_b32 s22, 4718592")
    e("s_mov_b32 s15, s2")
    e("s_cmp_ge_u32 s2, 128")
    e("s_cselect_b32 s20, s6, s20")
    e("s_cselect_b32 s21, s7, s21")
    e("s_cselect_b32 s22, 5308416, s22")
    e("s_cselect_b32 s14, 128, 0")
    e("s_mov_b32 s23, 0x20000")
    e("s_sub_u32 s15, s2, s14")
    e("s_mul_i32 s32, s15, 36864")
    for n in range(1, 4):
        e(f"s_add_u32 s{32+n}, s32, {9216*n}")
    e("s_cmp_lg_u32 s16, 0")
    e("s_cbranch_scc1 L_k3_a")
    e("s_cmp_ge_u32 s2, 128")
    e("s_cbranch_scc1 L_k3_dload")
    e("s_lshr_b32 s36, s15, 2")
    e("s_and_b32 s37, s15, 3")
    e("v_and_b32 v6, 15, v2")
    e("v_lshrrev_b32 v7, 4, v2")
    e("v_lshlrev_b32 v8, 3, v6")
    e("s_lshl_b32 s38, s36, 7")
    e(f"s_add_u32 s38, s38, {PML_OFF}")
    e("v_lshlrev_b32 v9, 9, v6")
    e("v_lshlrev_b32 v10, 5, v7")
    e("v_add_u32 v9, v9, v10")
    e("s_lshl_b32 s39, s36, 13")
    e("s_lshl_b32 s42, s37, 7")
    e("s_add_u32 s39, s39, s42")
    e(f"s_add_u32 s39, s39, {PACC_OFF}")
    e("buffer_load_dwordx2 v[12:13], v8, s[28:31], s38 offen")
    e("buffer_load_dwordx4 v[16:19], v9, s[28:31], s39 offen")
    e("buffer_load_dwordx4 v[20:23], v9, s[28:31], s39 offen offset:16")
    e("s_branch L_k3_a")
    e.label("L_k3_dload")
    e("v_and_b32 v6, 31, v2")
    e("v_lshlrev_b32 v8, 2, v6")
    e("s_lshl_b32 s36, s15, 7")
    for ks in range(4):
        e(f"s_add_u32 s37, s36, {P1_OFF + (ks*NCOL1 + 4096)*4}")
        e(f"buffer_load_dword v{12+ks}, v8, s[28:31], s37 offen")
        e(f"s_add_u32 s38, s36, {P1_OFF + (ks*NCOL1 + 8704)*4}")
        e(f"buffer_load_dword v{16+ks}, v8, s[28:31], s38 offen")
    e.label("L_k3_a")
    e("s_barrier")
    for n in range(4):
        e(f"buffer_load_dwordx4 v[{32+4*n}:{35+4*n}], v3, s[20:23], s{32+n} offen nt")
    e("s_cmp_lg_u32 s16, 0")
    e("s_cbranch_scc1 L_k3_b")
    e("s_cmp_ge_u32 s2, 128")
    e("s_cbranch_scc1 L_k3_dcomp")
    e("s_waitcnt vmcnt(6)")
    e("v_mov_b32 v14, v12")
    row_allreduce(e, "v_max_f32", 14)
    e("v_sub_f32 v12, v12, v14")
    e("v_mul_f32 v12, s41, v12")
    e("v_exp_f32 v12, v12")
    e("v_mul_f32 v13, v12, v13")
    row_allreduce(e, "v_add_f32", 13)
    e("v_rcp_f32 v14, v13")
    e("v_fma_f32 v15, -v13, v14, 1.0")
    e("v_fma_f32 v14, v15, v14, v14")
    e("v_mul_f32 v12, v12, v14")
    e("s_waitcnt vmcnt(4)")
    for k in range(8):
        e(f"v_mul_f32 v{16+k}, v12, v{16+k}")
    for sh in (8, 4, 2, 1):
        for k in range(8):
            e(f"v_add_f32_dpp v{16+k}, v{16+k}, v{16+k} row_ror:{sh} row_mask:0xf bank_mask:0xf")
    for k in range(0, 8, 2):
        rb2(e, 16 + k, 17 + k, 24, 40)
    e("v_lshlrev_b32 v10, 2, v7")
    for k in range(8):
        e(f"ds_write_b32 v10, v{16+k} offset:{XV + 16*k}")
    e("s_branch L_k3_b0")
    e.label("L_k3_dcomp")
    e("s_waitcnt vmcnt(4)")
    e("v_add_f32 v12, v12, v13")
    e("v_add_f32 v14, v14, v15")
    e("v_add_f32 v16, v16, v17")
    e("v_add_f32 v18, v18, v19")
    e("v_add_f32 v12, v12, v14")
    e("v_add_f32 v16, v16, v18")
    rb2(e, 12, 16, 24, 40)
    e("v_mul_f32 v13, s41, v12")
    e("v_max_f32 v13, s43, v13")
    e("v_exp_f32 v13, -v13")
    e("v_add_f32 v13, 1.0, v13")
    e("v_rcp_f32 v14, v13")
    e("v_fma_f32 v15, -v13, v14, 1.0")
    e("v_fma_f32 v14, v15, v14, v14")
    e("v_mul_f32 v12, v12, v14")
    rb(e, 12, 24)
    e("v_mul_f32 v12, v12, v16")
    rb(e, 12, 24)
    e("v_and_b32 v10, 7, v6")
    e("v_lshlrev_b32 v10, 4, v10")
    e("v_lshrrev_b32 v11, 3, v6")
    e("v_lshlrev_b32 v11, 2, v11")
    e("v_add_u32 v10, v10, v11")
    e(f"ds_write_b32 v10, v12 offset:{XV}")
    e.label("L_k3_b0")
    e("s_waitcnt lgkmcnt(0)")
    e.label("L_k3_b")
    e("s_barrier")
    e.label("L_k3_main")
    st()
    e("v_lshlrev_b32 v6, 4, v4")
    e(f"ds_read_b128 v[24:27], v6 offset:{XV}")
    e("v_mul_u32_u24 v8, 2304, v4")
    e("v_lshlrev_b32 v9, 5, v5")
    e("v_add_u32 v8, v8, v9")
    for n in range(4):
        if n == 0:
            e("s_waitcnt vmcnt(3) lgkmcnt(0)")
        else:
            e(f"s_waitcnt vmcnt({3-n})")
        for j in range(4):
            d = 32 + 4 * n + j
            ta, tb = 56 + 2 * (j % 2), 57 + 2 * (j % 2)
            e(f"v_lshlrev_b32 v{ta}, 16, v{d}")
            e(f"v_and_b32 v{tb}, s40, v{d}")
            if n == 0:
                e(f"v_mul_f32 v{48+2*j}, v{24+n}, v{ta}")
                e(f"v_mul_f32 v{49+2*j}, v{24+n}, v{tb}")
            else:
                e(f"v_fmac_f32 v{48+2*j}, v{24+n}, v{ta}")
                e(f"v_fmac_f32 v{49+2*j}, v{24+n}, v{tb}")
    e(f"ds_write_b128 v8, v[48:51] offset:{RED}")
    e(f"ds_write_b128 v8, v[52:55] offset:{RED+16}")
    e("s_waitcnt lgkmcnt(0)")
    st()
    e("s_barrier")
    st()
    e("v_lshlrev_b32 v6, 2, v0")
    for r in range(8):
        e(f"ds_read_b32 v{32+r}, v6 offset:{RED + 2304*r}")
    e("s_mul_i32 s36, s2, 2304")
    e(f"s_add_u32 s36, s36, {PART_OFF}")
    for r in range(1, 8):
        e(f"s_waitcnt lgkmcnt({7-r})")
        e(f"v_add_f32 v32, v32, v{32+r}")
    e("buffer_store_dword v32, v6, s[28:31], s36 offen")
    e.label("L_k3_end")
    st.flush(28, 44, 16, 36)
    e.label("L_k3_exit")
    e("s_endpgm")
    e(kernel_desc(name, 64))
    return name, 272, 576, RED + 8 * 2304


def k4(e, stamps):
    name = "final_kernel"
    RS, RF = 0, 4096
    e(kernel_head(name))
    e.label(name)
    e("s_cmp_ge_u32 s2, 9")
    e("s_cbranch_scc1 L_k4_exit")
    st = St(e, stamps, 3)
    st()
    e(f"s_load_dwordx2 s[4:5], s[0:1], {KA_X}")
    e(f"s_load_dwordx2 s[6:7], s[0:1], {KA_OUT}")
    e(f"s_load_dwordx2 s[8:9], s[0:1], {KA_WS}")
    e(f"s_mov_b32 s41, {C_LOG2E}")
    e("s_mov_b32 s42, 0xc2fc0000")
    e("s_mov_b32 s40, 0xffff0000")
    e("v_and_b32 v2, 15, v0")
    e("v_lshrrev_b32 v3, 4, v0")
    e("v_mul_u32_u24 v4, 2304, v3")
    e("v_lshlrev_b32 v5, 4, v2")
    e("v_add_u32 v4, v4, v5")
    e("s_lshl_b32 s32, s2, 8")
    e(f"s_add_u32 s32, s32, {PART_OFF}")
    e("s_waitcnt lgkmcnt(0)")
    st()
    e("v_lshrrev_b32 v1, 6, v0")
    e("v_readfirstlane_b32 s16, v1")
    srd(e, 20, 4, 1152)
    srd(e, 24, 6, 1152)
    srd(e, 28, 8, WS_BYTES)
    for n in range(17):
        e(f"s_add_u32 s{44+n}, s32, {n*16*2304}")
        e(f"buffer_load_dwordx4 v[{8+4*n}:{11+4*n}], v4, s[28:31], s{44+n} offen")
    e("v_lshlrev_b32 v6, 1, v0")
    e("s_lshl_b32 s33, s2, 7")
    e("buffer_load_ushort v80, v6, s[20:23], s33 offen")
    for n in range(1, 8):
        e(f"s_waitcnt vmcnt({17-n})")
        for j in range(4):
            e(f"v_add_f32 v{8+j}, v{8+j}, v{8+4*n+j}")
    for n in range(9, 17):
        e(f"s_waitcnt vmcnt({17-n})")
        for j in range(4):
            e(f"v_add_f32 v{40+j}, v{40+j}, v{8+4*n+j}")
    e("v_lshlrev_b32 v5, 4, v0")
    e(f"ds_write_b128 v5, v[8:11] offset:{RS}")
    e(f"ds_write_b128 v5, v[40:43] offset:{RF}")
    e("s_waitcnt lgkmcnt(0)")
    st()
    e("s_barrier")
    st()
    e("s_cmp_lg_u32 s16, 0")
    e("s_cbranch_scc1 L_k4_end")
    e("v_lshlrev_b32 v5, 2, v0")
    for p in range(16):
        e(f"ds_read_b32 v{8+p}, v5 offset:{RS + 256*p}")
    for p in range(16):
        e(f"ds_read_b32 v{40+p}, v5 offset:{RF + 256*p}")
    for p in range(1, 16):
        e(f"s_waitcnt lgkmcnt({min(15, 31-p)})")
        e(f"v_add_f32 v8, v8, v{8+p}")
    for p in range(1, 16):
        e(f"s_waitcnt lgkmcnt({15-p})")
        e(f"v_add_f32 v40, v40, v{40+p}")
    e("s_waitcnt vmcnt(0)")
    e("v_lshlrev_b32 v80, 16, v80")
    rb2(e, 8, 40, 9, 40)
    e("v_mul_f32 v10, s41, v40")
    e("v_max_f32 v10, s42, v10")
    e("v_exp_f32 v10, -v10")
    e("v_add_f32 v10, 1.0, v10")
    e("v_rcp_f32 v11, v10")
    e("v_fma_f32 v12, -v10, v11, 1.0")
    e("v_fma_f32 v11, v12, v11, v11")
    e("v_mul_f32 v40, v40, v11")
    rb(e, 40, 9)
    e("v_mul_f32 v8, v8, v40")
    rb(e, 8, 9)
    e("v_add_f32 v8, v80, v8")
    e("v_cvt_pk_bf16_f32 v8, v8, v8")
    e("buffer_store_short v8, v6, s[24:27], s33 offen")
    e.label("L_k4_end")
    st.flush(28, 84, 16, 36)
    e.label("L_k4_exit")
    e("s_endpgm")
    e(kernel_desc(name, 96))
    return name, 9, 256, 8192


def build(stamps=False):
    body = []
    launches = []
    for fn in (k1, k2, k3, k4):
        e = Emitter()
        name, grid, block, lds = fn(e, stamps)
        body.append(e.text())
        launches.append(f"; @launch kernel={name} grid=({grid},1,1) block=({block},1,1) lds={lds}")
    out = HEADER + "\n".join(launches) + "\n" + '.amdgcn_target "amdgcn-amd-amdhsa--gfx950"\n' + "\n".join(body)
    return out


if __name__ == "__main__":
    stamps = "--stamps" in sys.argv
    if "--dbg" in sys.argv:
        stamps = "dbg"
    path = [a for a in sys.argv[1:] if not a.startswith("--")][0]
    open(path, "w").write(build(stamps))
```

```python
import sys
from asmgen import Emitter
from common import *

NAME = "recurrent_scan__sliding_block_cached__swiglu_ffn__decode_kernel"
NWG = 256
P1T = 0x000000
PACC = 0x080000
PML = 0x100000
PARTS = 0x200000
PARTF = 0x400000
STAMP_OFF = 0x800000
WS_BYTES = 268435456
NG1 = 6656

L_XN = 0
L_RED1 = 2304
L_QL = 12288
L_OACC = 12800
L_ML = 20992
L_NONCE = 21248
L_XO = 21504
L_XD = 21632
L_REDS = 22528
L_REDF = 40960
LDS_BYTES = 59392

S_WAVE, S_MASK, S_NLO, S_NHI = 28, 29, 30, 31
SRD_A, SRD_B, SRD_WS, SRD_M = 32, 36, 40, 44
S_SCALE, S_LOG2E = 70, 71
NSTAMP = 14
S_ST = 72
SPIN_LIMIT = 400000


class St:
    def __init__(self, e, on):
        self.e, self.on, self.n = e, on, 0

    def __call__(self):
        if not self.on:
            return
        i = self.n
        self.n += 1
        assert i < NSTAMP
        self.e(f"s_memrealtime s[{S_ST+2*i}:{S_ST+2*i+1}]")

    def flush(self, vt, s_tmp):
        if not self.on:
            return
        e = self.e
        self()
        e("s_waitcnt lgkmcnt(0) vmcnt(0)")
        e("s_mov_b64 exec, 1")
        e(f"s_lshl_b32 s{s_tmp}, s2, 4")
        e(f"s_add_u32 s{s_tmp}, s{s_tmp}, s{S_WAVE}")
        e(f"s_lshl_b32 s{s_tmp}, s{s_tmp}, 7")
        e(f"s_add_u32 s{s_tmp}, s{s_tmp}, {STAMP_OFF}")
        e(f"v_mov_b32 v{vt+4}, 0")
        n = self.n + (self.n & 1)
        for i in range(0, n, 2):
            e(f"v_mov_b32 v{vt}, s{S_ST+2*i}")
            e(f"v_mov_b32 v{vt+1}, s{S_ST+2*i+1}")
            e(f"v_mov_b32 v{vt+2}, s{S_ST+2*i+2}")
            e(f"v_mov_b32 v{vt+3}, s{S_ST+2*i+3}")
            e(f"buffer_store_dwordx4 v[{vt}:{vt+3}], v{vt+4}, s[{SRD_WS}:{SRD_WS+3}], s{s_tmp} offen offset:{8*i}")
            e("s_nop 1")


def ws(r=SRD_WS):
    return f"s[{r}:{r+3}]"


def tagchk_init(e, vbad):
    e(f"v_mov_b32 v{vbad}, 0")


def tagchk(e, vbad, q, t0, t1):
    e(f"v_xor_b32 v{t0}, s{S_NLO}, v{q+2}")
    e(f"v_xor_b32 v{t1}, s{S_NHI}, v{q+3}")
    e(f"v_or3_b32 v{vbad}, v{vbad}, v{t0}, v{t1}")


def spin_tail(e, vbad, s_cnt, lbl_retry, lbl_ok):
    e(f"v_cmp_ne_u32 vcc, 0, v{vbad}")
    e("s_cmp_eq_u64 vcc, 0")
    e(f"s_cbranch_scc1 {lbl_ok}")
    e(f"s_add_u32 s{s_cnt}, s{s_cnt}, 1")
    e("s_sleep 1")
    e(f"s_cmp_lt_u32 s{s_cnt}, {SPIN_LIMIT}")
    e(f"s_cbranch_scc1 {lbl_retry}")


def set_tag(e, q):
    e(f"v_mov_b32 v{q+2}, s{S_NLO}")
    e(f"v_mov_b32 v{q+3}, s{S_NHI}")


def prologue(e, st, prefetch):
    e("s_getpc_b64 s[48:49]")
    e.label("L_pfbase")
    e(f"s_load_dwordx8 s[4:11], s[0:1], {KA_X}")
    e(f"s_load_dwordx2 s[12:13], s[0:1], {KA_WO}")
    e(f"s_load_dwordx8 s[16:23], s[0:1], {KA_WG}")
    e(f"s_load_dwordx4 s[24:27], s[0:1], {KA_DBG}")
    e("v_lshrrev_b32 v1, 6, v0")
    e("v_and_b32 v2, 63, v0")
    e(f"v_readfirstlane_b32 s{S_WAVE}, v1")
    if prefetch:
        e("v_lshlrev_b32 v3, 4, v0")
        e("s_mov_b32 s50, L_code_end-L_pfbase")
        e("s_mov_b32 s51, 0x20000")
        e("buffer_load_dwordx4 v[116:119], v3, s[48:51], 0 offen")
    e(f"s_mov_b32 s{S_MASK}, 0xffff0000")
    e(f"s_mov_b32 s{S_SCALE}, {C_SCALE}")
    e(f"s_mov_b32 s{S_LOG2E}, {C_LOG2E}")
    e("s_waitcnt lgkmcnt(0)")
    st()
    srd(e, SRD_WS, 26, WS_BYTES)
    srd(e, SRD_B, 24, 256)
    e("s_or_b32 s50, s2, s28")
    e("s_cmp_lg_u32 s50, 0")
    e("s_cbranch_scc1 L_nopub")
    e(f"s_memrealtime s[{S_NLO}:{S_NHI}]")
    e("s_waitcnt lgkmcnt(0)")
    e(f"s_or_b32 s{S_NLO}, s{S_NLO}, 1")
    e(f"v_mov_b32 v8, s{S_NLO}")
    e(f"v_mov_b32 v9, s{S_NHI}")
    e("v_mov_b32 v10, 0")
    e("s_mov_b64 exec, 1")
    e(f"buffer_store_dwordx2 v[8:9], v10, s[{SRD_B}:{SRD_B+3}], 0 offen sc1")
    e("s_mov_b64 exec, -1")
    e.label("L_nopub")


def nonce_fetch_issue(e, vq):
    e(f"v_mov_b32 v{vq+2}, 0")
    e(f"buffer_load_dwordx2 v[{vq}:{vq+1}], v{vq+2}, s[{SRD_M}:{SRD_M+3}], 0 offen sc1")


def nonce_finish(e, vq, tag):
    e("s_mov_b32 s50, 0")
    e(f"v_mov_b32 v{vq+2}, 0")
    e.label(f"L_nonce_chk{tag}")
    e("s_waitcnt vmcnt(0)")
    e(f"v_readfirstlane_b32 s{S_NLO}, v{vq}")
    e(f"v_readfirstlane_b32 s{S_NHI}, v{vq+1}")
    e(f"s_cmp_lg_u32 s{S_NLO}, 0")
    e(f"s_cbranch_scc1 L_nonce_ok{tag}")
    e("s_add_u32 s50, s50, 1")
    e("s_sleep 1")
    e(f"s_cmp_ge_u32 s50, {SPIN_LIMIT}")
    e(f"s_cbranch_scc1 L_nonce_ok{tag}")
    e(f"buffer_load_dwordx2 v[{vq}:{vq+1}], v{vq+2}, s[{SRD_M}:{SRD_M+3}], 0 offen sc1")
    e(f"s_branch L_nonce_chk{tag}")
    e.label(f"L_nonce_ok{tag}")
    e(f"ds_write_b64 v{vq+2}, v[{vq}:{vq+1}] offset:{L_NONCE}")


def nonce_read(e, vq):
    e(f"v_mov_b32 v{vq+2}, 0")
    e(f"ds_read_b64 v[{vq}:{vq+1}], v{vq+2} offset:{L_NONCE}")
    e("s_waitcnt lgkmcnt(0)")
    e(f"v_readfirstlane_b32 s{S_NLO}, v{vq}")
    e(f"v_readfirstlane_b32 s{S_NHI}, v{vq+1}")


def phase1(e, st):
    XN, RED = L_XN, L_RED1
    e("s_cmp_ge_u32 s2, 208")
    e("s_cbranch_scc1 L_p1_skip")
    e("s_mov_b32 s48, 0")
    for lim in (52, 104, 156):
        e(f"s_cmp_ge_u32 s2, {lim}")
        e("s_addc_u32 s48, s48, 0")
    e("s_mul_i32 s49, s48, 52")
    e("s_sub_u32 s49, s2, s49")
    e("v_mul_u32_u24 v5, 18, v2")
    e("v_mul_u32_u24 v6, 36, v2")
    srd(e, SRD_M, 4, 1152)
    e(f"s_cmp_lg_u32 s{S_WAVE}, 0")
    e("s_cbranch_scc1 L_p1_a")
    for i in range(9):
        e(f"buffer_load_ushort v{8+i}, v5, {ws(SRD_M)}, 0 offen offset:{2*i}")
    e.label("L_p1_a")
    A = SRD_A
    e(f"s_mov_b32 s{A}, s10")
    e(f"s_mov_b32 s{A+1}, s11")
    e("s_mov_b32 s50, 8192")
    e("s_mov_b32 s52, 0")
    e("s_cmp_ge_u32 s49, 16")
    e(f"s_cselect_b32 s{A}, s16, s{A}")
    e(f"s_cselect_b32 s{A+1}, s17, s{A+1}")
    e("s_cselect_b32 s50, 9216, s50")
    e("s_cselect_b32 s52, 16, s52")
    e("s_cmp_ge_u32 s49, 34")
    e(f"s_cselect_b32 s{A}, s18, s{A}")
    e(f"s_cselect_b32 s{A+1}, s19, s{A+1}")
    e("s_cselect_b32 s52, 34, s52")
    e("s_sub_u32 s51, s49, s52")
    e(f"s_mul_i32 s{A+2}, s50, 576")
    e(f"s_mov_b32 s{A+3}, 0x20000")
    e("s_mul_i32 s54, s48, 144")
    e(f"s_lshl_b32 s55, s{S_WAVE}, 4")
    e("s_add_u32 s53, s54, s55")
    e("s_mul_i32 s54, s53, s50")
    e("s_lshl_b32 s55, s51, 9")
    e("s_add_u32 s54, s54, s55")
    for i in range(1, 8):
        e(f"s_add_u32 s{54+i}, s{54+i-1}, s50")
    e("s_lshl_b32 s62, s50, 3")
    e("v_and_b32 v3, 31, v2")
    e("v_lshlrev_b32 v3, 4, v3")
    e("v_lshrrev_b32 v4, 5, v2")
    e("v_mul_lo_u32 v4, v4, s62")
    e("v_add_u32 v3, v3, v4")
    e("s_barrier")
    for i in range(8):
        e(f"buffer_load_dwordx4 v[{32+4*i}:{35+4*i}], v3, {ws(A)}, s{54+i} offen nt")
    e("v_lshrrev_b32 v7, 5, v2")
    e("v_lshlrev_b32 v7, 5, v7")
    e("s_lshl_b32 s63, s53, 2")
    e("v_add_u32 v7, s63, v7")
    e("v_and_b32 v80, 31, v2")
    e("v_lshlrev_b32 v80, 5, v80")
    e("v_lshrrev_b32 v81, 5, v2")
    e("v_lshlrev_b32 v81, 4, v81")
    e("v_add_u32 v80, v80, v81")
    e(f"s_lshl_b32 s63, s{S_WAVE}, 10")
    e(f"s_add_u32 s63, s63, {RED}")
    e("v_add_u32 v80, s63, v80")
    e(f"s_cmp_lg_u32 s{S_WAVE}, 0")
    e("s_cbranch_scc1 L_p1_b")
    e("s_waitcnt vmcnt(8)")
    emit_ln(e, list(range(8, 17)), list(range(17, 24)) + [72], 63, S_MASK, 6, XN)
    srd(e, SRD_M, 24, 256)
    nonce_fetch_issue(e, 84)
    e("s_waitcnt lgkmcnt(0)")
    e.label("L_p1_b")
    st()
    e("s_barrier")
    e(f"ds_read_b128 v[24:27], v7 offset:{XN}")
    e(f"ds_read_b128 v[28:31], v7 offset:{XN+16}")
    e(f"s_cmp_lg_u32 s{S_WAVE}, 0")
    e("s_cbranch_scc1 L_p1_c")
    e("s_waitcnt vmcnt(0)")
    e.label("L_p1_c")
    for i in range(8):
        if i == 0:
            e("s_waitcnt lgkmcnt(0)")
        e(f"s_waitcnt vmcnt({7-i})")
        for j in range(4):
            d = 32 + 4 * i + j
            ta, tb = 72 + 2 * (j % 2), 73 + 2 * (j % 2)
            e(f"v_lshlrev_b32 v{ta}, 16, v{d}")
            e(f"v_and_b32 v{tb}, s{S_MASK}, v{d}")
            if i == 0:
                e(f"v_mul_f32 v{64+2*j}, v{24+i}, v{ta}")
                e(f"v_mul_f32 v{65+2*j}, v{24+i}, v{tb}")
            else:
                e(f"v_fmac_f32 v{64+2*j}, v{24+i}, v{ta}")
                e(f"v_fmac_f32 v{65+2*j}, v{24+i}, v{tb}")
    st()
    for j in range(4):
        e(f"v_permlane32_swap_b32 v{64+j}, v{68+j}")
    for j in range(4):
        e(f"v_add_f32 v{76+j}, v{64+j}, v{68+j}")
    e("ds_write_b128 v80, v[76:79]")
    e(f"s_cmp_lg_u32 s{S_WAVE}, 0")
    e("s_cbranch_scc1 L_p1_d")
    nonce_finish(e, 84, "a")
    e.label("L_p1_d")
    e("s_waitcnt lgkmcnt(0)")
    e("s_barrier")
    e(f"s_cmp_lg_u32 s{S_WAVE}, 0")
    e("s_cbranch_scc1 L_p1_e")
    e("v_lshlrev_b32 v1, 3, v2")
    for h in range(2):
        for s in range(9):
            e(f"ds_read_b64 v[{32+18*h+2*s}:{33+18*h+2*s}], v1 offset:{RED + 1024*s + 512*h}")
    e(f"s_mul_i32 s54, s48, {NG1}")
    e("s_lshl_b32 s55, s49, 7")
    e("s_add_u32 s54, s54, s55")
    e("s_lshl_b32 s54, s54, 4")
    if P1T:
        e(f"s_add_u32 s54, s54, {P1T}")
    e("v_lshlrev_b32 v1, 4, v2")
    set_tag(e, 76)
    set_tag(e, 80)
    for h in range(2):
        e(f"s_waitcnt lgkmcnt({9 - 9*h})")
        b = 32 + 18 * h
        e(f"v_pk_add_f32 v[{b}:{b+1}], v[{b}:{b+1}], v[{b+2}:{b+3}]")
        e(f"v_pk_add_f32 v[{b+4}:{b+5}], v[{b+4}:{b+5}], v[{b+6}:{b+7}]")
        e(f"v_pk_add_f32 v[{b+8}:{b+9}], v[{b+8}:{b+9}], v[{b+10}:{b+11}]")
        e(f"v_pk_add_f32 v[{b+12}:{b+13}], v[{b+12}:{b+13}], v[{b+14}:{b+15}]")
        e(f"v_pk_add_f32 v[{b}:{b+1}], v[{b}:{b+1}], v[{b+4}:{b+5}]")
        e(f"v_pk_add_f32 v[{b+8}:{b+9}], v[{b+8}:{b+9}], v[{b+12}:{b+13}]")
        e(f"v_pk_add_f32 v[{b}:{b+1}], v[{b}:{b+1}], v[{b+16}:{b+17}]")
        e(f"v_pk_add_f32 v[{76+4*h}:{77+4*h}], v[{b}:{b+1}], v[{b+8}:{b+9}]")
        e(f"buffer_store_dwordx4 v[{76+4*h}:{79+4*h}], v1, {ws()}, s54 offen offset:{1024*h} sc1")
    e("s_branch L_p1_e")
    e.label("L_p1_skip")
    e(f"s_cmp_lg_u32 s{S_WAVE}, 0")
    e("s_cbranch_scc1 L_p1_skip_b")
    srd(e, SRD_M, 24, 256)
    nonce_fetch_issue(e, 84)
    nonce_finish(e, 84, "b")
    e("s_waitcnt lgkmcnt(0)")
    e.label("L_p1_skip_b")
    e("s_barrier")
    e.label("L_p1_e")
    nonce_read(e, 84)
    st()


def phase2(e, st):
    QL, OACC, ML = L_QL, L_OACC, L_ML
    e("s_lshr_b32 s48, s2, 4")
    e("s_and_b32 s49, s2, 15")
    e(f"s_cmp_eq_u32 s{S_WAVE}, 0")
    e("s_cbranch_scc1 L_p2_helper")
    srd(e, SRD_A, 6, 33554432)
    srd(e, SRD_B, 8, 33554432)
    e(f"s_sub_u32 s50, s{S_WAVE}, 1")
    e("s_lshl_b32 s51, s48, 21")
    e("s_lshl_b32 s52, s49, 15")
    e("s_lshl_b32 s53, s50, 12")
    e("s_add_u32 s51, s51, s52")
    e("s_add_u32 s51, s51, s53")
    e("s_add_u32 s51, s51, 0x180000")
    e("v_and_b32 v3, 15, v2")
    e("v_lshlrev_b32 v3, 8, v3")
    e("v_lshrrev_b32 v5, 4, v2")
    e("v_lshlrev_b32 v4, 4, v5")
    e("v_add_u32 v3, v3, v4")
    e("v_lshlrev_b32 v4, 4, v2")
    for i in range(4):
        e(f"buffer_load_dwordx4 v[{12+4*i}:{15+4*i}], v3, {ws(SRD_A)}, s51 offen offset:{64*i} nt")
    for i in range(4):
        e(f"buffer_load_dwordx4 v[{28+4*i}:{31+4*i}], v4, {ws(SRD_B)}, s51 offen offset:{1024*i} nt")
    e("v_and_b32 v70, 7, v2")
    e("v_and_b32 v71, 1, v70")
    e("v_lshlrev_b32 v71, 4, v71")
    e("v_mov_b32 v72, 0xffff")
    e("v_lshlrev_b32 v72, v71, v72")
    e("v_lshrrev_b32 v70, 1, v70")
    for k in range(4):
        e(f"v_cmp_eq_u32 vcc, {k}, v70")
        e(f"v_cndmask_b32 v{8+k}, 0, v72, vcc")
    e("v_bfe_u32 v6, v2, 3, 1")
    e("v_lshlrev_b32 v6, 6, v6")
    e("v_lshlrev_b32 v70, 2, v5")
    e("v_add_u32 v6, v6, v70")
    e("v_bfe_u32 v73, v2, 2, 1")
    e("v_lshlrev_b32 v73, 8, v73")
    e("v_lshlrev_b32 v70, 4, v5")
    e("v_add_u32 v73, v73, v70")
    e("v_lshrrev_b32 v7, 5, v2")
    e("v_lshlrev_b32 v7, 9, v7")
    e("v_and_b32 v70, 15, v2")
    e("v_lshlrev_b32 v70, 5, v70")
    e("v_add_u32 v7, v7, v70")
    e("v_bfe_u32 v70, v2, 4, 1")
    e("v_lshlrev_b32 v71, 4, v70")
    e("v_add_u32 v7, v7, v71")
    e("s_lshl_b32 s52, s50, 10")
    e(f"s_add_u32 s52, s52, {OACC}")
    e("v_add_u32 v7, s52, v7")
    e("v_lshlrev_b32 v69, 3, v70")
    e("s_lshl_b32 s52, s50, 4")
    e(f"s_add_u32 s52, s52, {ML}")
    e("v_add_u32 v69, s52, v69")
    e("s_barrier")
    st()
    for i in range(4):
        e(f"ds_read_b128 v[{44+4*i}:{47+4*i}], v73 offset:{QL + 64*i}")
    e("s_waitcnt vmcnt(4) lgkmcnt(0)")
    st()
    for i in range(4):
        c = "0" if i == 0 else "v[60:63]"
        e(f"v_mfma_f32_16x16x32_bf16 v[60:63], v[{44+4*i}:{47+4*i}], v[{12+4*i}:{15+4*i}], {c}")
    e("v_cvt_pk_bf16_f32 v70, v60, v60")
    e("v_lshlrev_b32 v70, 16, v70")
    e(f"v_mul_f32 v70, s{S_SCALE}, v70")
    rb(e, 70, 71)
    e("v_mov_b32 v74, v70")
    row_allreduce(e, "v_max_f32", 74)
    e("v_sub_f32 v70, v70, v74")
    e(f"v_mul_f32 v70, s{S_LOG2E}, v70")
    e("v_exp_f32 v70, v70")
    e("v_mov_b32 v75, v70")
    row_allreduce(e, "v_add_f32", 75)
    e("v_cvt_pk_bf16_f32 v71, v70, v70")
    e("ds_write_b64 v69, v[74:75]")
    for i in range(4):
        e(f"ds_bpermute_b32 v{76+i}, v6, v71 offset:{16*i}")
    for i in range(4):
        e(f"s_waitcnt vmcnt({3-i}) lgkmcnt({3-i})")
        for k in range(4):
            e(f"v_and_b32 v{80+4*(i%2)+k}, v{8+k}, v{76+i}")
        c = "0" if i == 0 else "v[64:67]"
        a = 80 + 4 * (i % 2)
        e(f"v_mfma_f32_16x16x32_bf16 v[64:67], v[{a}:{a+3}], v[{28+4*i}:{31+4*i}], {c}")
    e("ds_write_b128 v7, v[64:67]")
    e("s_waitcnt lgkmcnt(0)")
    st()
    e("s_barrier")
    e("s_branch L_p2_comb")
    e.label("L_p2_helper")
    e("v_lshlrev_b32 v3, 4, v2")
    e("s_lshl_b32 s50, s48, 11")
    if P1T:
        e(f"s_add_u32 s50, s50, {P1T}")
    e("s_mov_b32 s51, 0")
    e.label("L_p2_retry")
    for ks in range(4):
        e(f"s_add_u32 s{52+ks}, s50, {ks * NG1 * 16}")
        e(f"buffer_load_dwordx4 v[{12+8*ks}:{15+8*ks}], v3, {ws()}, s{52+ks} offen sc1")
        e(f"buffer_load_dwordx4 v[{16+8*ks}:{19+8*ks}], v3, {ws()}, s{52+ks} offen offset:1024 sc1")
    tagchk_init(e, 44)
    for n in range(8):
        e(f"s_waitcnt vmcnt({7-n})")
        tagchk(e, 44, 12 + 4 * n, 45, 46)
    spin_tail(e, 44, 51, "L_p2_retry", "L_p2_ok")
    e.label("L_p2_ok")
    for h in range(2):
        b = 12 + 4 * h
        e(f"v_pk_add_f32 v[{b}:{b+1}], v[{b}:{b+1}], v[{b+8}:{b+9}]")
        e(f"v_pk_add_f32 v[{b+16}:{b+17}], v[{b+16}:{b+17}], v[{b+24}:{b+25}]")
        e(f"v_pk_add_f32 v[{b}:{b+1}], v[{b}:{b+1}], v[{b+16}:{b+17}]")
        e(f"v_cvt_pk_bf16_f32 v{48+h}, v{b}, v{b+1}")
    e("v_lshlrev_b32 v4, 2, v2")
    e(f"ds_write_b32 v4, v48 offset:{QL}")
    e(f"ds_write_b32 v4, v49 offset:{QL+256}")
    e("s_waitcnt lgkmcnt(0)")
    e("s_barrier")
    e("s_barrier")
    e.label("L_p2_comb")
    e(f"s_cmp_ge_u32 s{S_WAVE}, 2")
    e("s_cbranch_scc1 L_p2_end")
    e(f"s_lshl_b32 s50, s{S_WAVE}, 3")
    e(f"s_add_u32 s50, s50, {ML}")
    e("v_mov_b32 v3, s50")
    e("v_lshlrev_b32 v4, 3, v2")
    e(f"s_lshl_b32 s50, s{S_WAVE}, 9")
    e("v_add_u32 v4, s50, v4")
    for w in range(8):
        e(f"ds_read_b64 v[{12+2*w}:{13+2*w}], v3 offset:{16*w}")
    for w in range(8):
        e(f"ds_read_b64 v[{28+2*w}:{29+2*w}], v4 offset:{OACC + 1024*w}")
    e("s_lshl_b32 s51, s48, 1")
    e(f"s_add_u32 s51, s51, s{S_WAVE}")
    e("s_lshl_b32 s51, s51, 4")
    e("s_add_u32 s51, s51, s49")
    e("s_lshl_b32 s52, s51, 10")
    e(f"s_add_u32 s52, s52, {PACC}")
    e("s_lshl_b32 s53, s51, 7")
    e(f"s_add_u32 s53, s53, {PML}")
    e("s_waitcnt lgkmcnt(8)")
    e("v_max3_f32 v48, v12, v14, v16")
    e("v_max3_f32 v48, v48, v18, v20")
    e("v_max3_f32 v48, v48, v22, v24")
    e("v_max_f32 v48, v48, v26")
    for w in range(8):
        e(f"v_sub_f32 v{52+w}, v{12+2*w}, v48")
    for w in range(8):
        e(f"v_mul_f32 v{52+w}, s{S_LOG2E}, v{52+w}")
    for w in range(8):
        e(f"v_exp_f32 v{52+w}, v{52+w}")
    e("v_mul_f32 v49, v52, v13")
    for w in range(1, 8):
        e(f"v_fmac_f32 v49, v{52+w}, v{13+2*w}")
    set_tag(e, 48)
    e("s_waitcnt lgkmcnt(0)")
    e("v_mul_f32 v60, v52, v28")
    e("v_mul_f32 v61, v52, v29")
    for w in range(1, 8):
        e(f"v_fmac_f32 v60, v{52+w}, v{28+2*w}")
        e(f"v_fmac_f32 v61, v{52+w}, v{29+2*w}")
    set_tag(e, 60)
    e("v_lshlrev_b32 v6, 4, v2")
    e(f"buffer_store_dwordx4 v[60:63], v6, {ws()}, s52 offen sc1")
    e("s_mov_b64 s[54:55], exec")
    e("s_mov_b64 exec, 1")
    e(f"buffer_store_dwordx4 v[48:51], v6, {ws()}, s53 offen sc1")
    e("s_mov_b64 exec, s[54:55]")
    e.label("L_p2_end")
    st()


def phase3(e, st):
    e("v_lshlrev_b32 v3, 4, v0")
    e("v_mul_u32_u24 v4, 911, v0")
    e("v_lshrrev_b32 v4, 16, v4")
    e("v_mul_u32_u24 v5, 72, v4")
    e("v_sub_u32 v5, v0, v5")
    srd(e, SRD_A, 12, 4718592)
    e(f"s_mov_b32 s{SRD_B}, s20")
    e(f"s_mov_b32 s{SRD_B+1}, s21")
    e("s_mul_i32 s48, s2, 20736")
    e(f"s_add_u32 s{SRD_B+2}, s48, 20736")
    e(f"s_mov_b32 s{SRD_B+3}, 0x20000")
    e("s_mul_i32 s49, s2, 18432")
    e("s_add_u32 s50, s49, 9216")
    e("s_add_u32 s51, s48, 9216")
    e("s_add_u32 s52, s48, 18432")
    e(f"s_cmp_lg_u32 s{S_WAVE}, 0")
    e("s_cbranch_scc1 L_p3_a")
    e("s_lshr_b32 s53, s2, 3")
    e("s_and_b32 s54, s2, 7")
    e("v_and_b32 v6, 15, v2")
    e("v_lshrrev_b32 v7, 4, v2")
    e("v_lshlrev_b32 v8, 10, v6")
    e("v_lshl_add_u32 v8, v7, 4, v8")
    e("s_lshl_b32 s55, s53, 14")
    e("s_lshl_b32 s56, s54, 7")
    e("s_add_u32 s55, s55, s56")
    e(f"s_add_u32 s55, s55, {PACC}")
    e("v_lshlrev_b32 v9, 7, v6")
    e("s_lshl_b32 s56, s53, 11")
    e(f"s_add_u32 s56, s56, {PML}")
    e("v_min_u32 v10, 8, v2")
    e("v_lshlrev_b32 v11, 4, v10")
    e("s_mul_i32 s57, s2, 144")
    e("s_mov_b32 s58, 0")
    e.label("L_p3_retry")
    e(f"buffer_load_dwordx4 v[12:15], v9, {ws()}, s56 offen sc1")
    e(f"buffer_load_dwordx4 v[16:19], v8, {ws()}, s55 offen sc1")
    e(f"buffer_load_dwordx4 v[20:23], v8, {ws()}, s55 offen offset:64 sc1")
    for ks in range(4):
        e(f"s_add_u32 s59, s57, {P1T + (ks*NG1 + 2048)*16}")
        e(f"buffer_load_dwordx4 v[{84+8*ks}:{87+8*ks}], v11, {ws()}, s59 offen sc1")
        e(f"s_add_u32 s60, s57, {P1T + (ks*NG1 + 4352)*16}")
        e(f"buffer_load_dwordx4 v[{88+8*ks}:{91+8*ks}], v11, {ws()}, s60 offen sc1")
    tagchk_init(e, 24)
    quads = [12, 16, 20] + [84 + 4 * i for i in range(8)]
    for n, q in enumerate(quads):
        e(f"s_waitcnt vmcnt({10-n})")
        tagchk(e, 24, q, 25, 26)
    spin_tail(e, 24, 58, "L_p3_retry", "L_p3_ok")
    e.label("L_p3_ok")
    e.label("L_p3_a")
    e("s_barrier")
    st()
    for n, (srd_, so) in enumerate(((SRD_A, 49), (SRD_A, 50), (SRD_B, 48), (SRD_B, 51), (SRD_B, 52))):
        e(f"buffer_load_dwordx4 v[{32+4*n}:{35+4*n}], v3, {ws(srd_)}, s{so} offen nt")
    e(f"s_cmp_lg_u32 s{S_WAVE}, 0")
    e("s_cbranch_scc1 L_p3_b")
    e("v_mov_b32 v14, v12")
    row_allreduce(e, "v_max_f32", 14)
    e("v_sub_f32 v12, v12, v14")
    e(f"v_mul_f32 v12, s{S_LOG2E}, v12")
    e("v_exp_f32 v12, v12")
    e("v_mul_f32 v13, v12, v13")
    row_allreduce(e, "v_add_f32", 13)
    e("v_rcp_f32 v14, v13")
    e("v_fma_f32 v15, -v13, v14, 1.0")
    e("v_fma_f32 v14, v15, v14, v14")
    e("v_mul_f32 v12, v12, v14")
    vals = [16, 17, 20, 21]
    for r in vals:
        e(f"v_mul_f32 v{r}, v12, v{r}")
    for sh in (8, 4, 2, 1):
        for r in vals:
            e(f"v_add_f32_dpp v{r}, v{r}, v{r} row_ror:{sh} row_mask:0xf bank_mask:0xf")
    rb2(e, 16, 17, 24, S_MASK)
    rb2(e, 20, 21, 24, S_MASK)
    e("v_lshlrev_b32 v7, 4, v7")
    e(f"ds_write_b32 v7, v16 offset:{L_XO}")
    e(f"ds_write_b32 v7, v17 offset:{L_XO+8}")
    e(f"ds_write_b32 v7, v20 offset:{L_XO+4}")
    e(f"ds_write_b32 v7, v21 offset:{L_XO+12}")
    e("v_pk_add_f32 v[84:85], v[84:85], v[92:93]")
    e("v_pk_add_f32 v[100:101], v[100:101], v[108:109]")
    e("v_pk_add_f32 v[84:85], v[84:85], v[100:101]")
    e("v_pk_add_f32 v[88:89], v[88:89], v[96:97]")
    e("v_pk_add_f32 v[104:105], v[104:105], v[112:113]")
    e("v_pk_add_f32 v[88:89], v[88:89], v[104:105]")
    rb2(e, 84, 85, 24, S_MASK)
    rb2(e, 88, 89, 24, S_MASK)
    e("s_mov_b32 s59, 0xc2fc0000")
    for r in (84, 85):
        e(f"v_mul_f32 v24, s{S_LOG2E}, v{r}")
        e("v_max_f32 v24, s59, v24")
        e("v_exp_f32 v24, -v24")
        e("v_add_f32 v24, 1.0, v24")
        e("v_rcp_f32 v25, v24")
        e("v_fma_f32 v26, -v24, v25, 1.0")
        e("v_fma_f32 v25, v26, v25, v25")
        e(f"v_mul_f32 v{r}, v{r}, v25")
    rb2(e, 84, 85, 24, S_MASK)
    e("v_mul_f32 v84, v84, v88")
    e("v_mul_f32 v85, v85, v89")
    rb2(e, 84, 85, 24, S_MASK)
    e("v_lshlrev_b32 v24, 1, v10")
    e("v_and_b32 v25, 7, v24")
    e("v_lshlrev_b32 v25, 4, v25")
    e("v_lshrrev_b32 v26, 3, v24")
    e("v_lshl_add_u32 v25, v26, 2, v25")
    e(f"ds_write_b32 v25, v84 offset:{L_XD}")
    e(f"ds_write_b32 v25, v85 offset:{L_XD+16}")
    e("v_subrev_u32 v24, 16, v2")
    e("v_lshlrev_b32 v24, 4, v24")
    e("v_mov_b32 v25, 0")
    e("v_cmp_gt_u32 vcc, 8, v24")
    e("v_subrev_u32 v26, 18, v2")
    e("v_cmp_gt_u32 vcc, 6, v26")
    e("s_and_saveexec_b64 s[60:61], vcc")
    e(f"ds_write_b32 v24, v25 offset:{L_XD+8}")
    e("s_mov_b64 exec, s[60:61]")
    e("s_waitcnt lgkmcnt(0)")
    e.label("L_p3_b")
    e("s_barrier")
    st()
    e("v_lshlrev_b32 v6, 3, v4")
    e(f"ds_read_b64 v[24:25], v6 offset:{L_XO}")
    e("v_lshlrev_b32 v6, 4, v4")
    e(f"ds_read_b96 v[28:30], v6 offset:{L_XD}")
    e("v_mul_u32_u24 v8, 2304, v4")
    e("v_lshl_add_u32 v8, v5, 5, v8")
    plan = [(24, 52, True), (25, 52, False), (28, 60, True), (29, 60, False), (30, 60, False)]
    for n, (xv, acc, first) in enumerate(plan):
        if n == 0:
            e("s_waitcnt lgkmcnt(0)")
        e(f"s_waitcnt vmcnt({4-n})")
        for j in range(4):
            d = 32 + 4 * n + j
            ta, tb = 68 + 2 * (j % 2), 69 + 2 * (j % 2)
            e(f"v_lshlrev_b32 v{ta}, 16, v{d}")
            e(f"v_and_b32 v{tb}, s{S_MASK}, v{d}")
            if first:
                e(f"v_mul_f32 v{acc+2*j}, v{xv}, v{ta}")
                e(f"v_mul_f32 v{acc+2*j+1}, v{xv}, v{tb}")
            else:
                e(f"v_fmac_f32 v{acc+2*j}, v{xv}, v{ta}")
                e(f"v_fmac_f32 v{acc+2*j+1}, v{xv}, v{tb}")
    e(f"ds_write_b128 v8, v[52:55] offset:{L_REDS}")
    e(f"ds_write_b128 v8, v[56:59] offset:{L_REDS+16}")
    e(f"ds_write_b128 v8, v[60:63] offset:{L_REDF}")
    e(f"ds_write_b128 v8, v[64:67] offset:{L_REDF+16}")
    e("s_waitcnt lgkmcnt(0)")
    st()
    e("s_barrier")
    e("v_cmp_le_u32 vcc, 288, v0")
    e("v_mov_b32 v6, 0")
    e("v_mov_b32 v7, 288")
    e("v_cndmask_b32 v7, 0, v7, vcc")
    e("v_sub_u32 v6, v0, v7")
    e(f"v_mov_b32 v9, {L_REDF - L_REDS}")
    e("v_cndmask_b32 v9, 0, v9, vcc")
    e("v_lshl_add_u32 v9, v6, 3, v9")
    for r in range(8):
        e(f"ds_read_b64 v[{32+2*r}:{33+2*r}], v9 offset:{L_REDS + 2304*r}")
    e(f"v_mov_b32 v10, {PARTF - PARTS}")
    e("v_cndmask_b32 v10, 0, v10, vcc")
    e("v_lshl_add_u32 v10, v6, 4, v10")
    e("s_mul_i32 s48, s2, 4608")
    e(f"s_add_u32 s48, s48, {PARTS}")
    e("s_waitcnt lgkmcnt(4)")
    e("v_pk_add_f32 v[32:33], v[32:33], v[34:35]")
    e("v_pk_add_f32 v[36:37], v[36:37], v[38:39]")
    e("v_pk_add_f32 v[32:33], v[32:33], v[36:37]")
    e("s_waitcnt lgkmcnt(0)")
    e("v_pk_add_f32 v[40:41], v[40:41], v[42:43]")
    e("v_pk_add_f32 v[44:45], v[44:45], v[46:47]")
    e("v_pk_add_f32 v[40:41], v[40:41], v[44:45]")
    e("v_pk_add_f32 v[48:49], v[32:33], v[40:41]")
    set_tag(e, 48)
    e(f"buffer_store_dwordx4 v[48:51], v10, {ws()}, s48 offen sc1")
    st()


def phase4(e, st):
    e("s_cmp_ge_u32 s2, 144")
    e("s_cbranch_scc1 L_end")
    e(f"s_cmp_lg_u32 s{S_WAVE}, 0")
    e("s_cbranch_scc1 L_end")
    srd(e, SRD_A, 4, 1152)
    srd(e, SRD_B, 22, 1152)
    e("v_and_b32 v3, 1, v2")
    e("v_lshlrev_b32 v4, 2, v3")
    e("s_lshl_b32 s48, s2, 3")
    e(f"buffer_load_dword v80, v4, {ws(SRD_A)}, s48 offen")
    e("v_lshrrev_b32 v5, 1, v2")
    e("v_mul_u32_u24 v5, 4608, v5")
    e("v_lshl_add_u32 v5, v3, 4, v5")
    e("s_lshl_b32 s49, s2, 5")
    e("s_mov_b32 s50, 0")
    for i in range(8):
        e(f"s_add_u32 s{52+i}, s49, {PARTS + i*32*4608}")
        e(f"s_add_u32 s{60+i}, s49, {PARTF + i*32*4608}")
    e.label("L_p4_retry")
    for i in range(8):
        e(f"buffer_load_dwordx4 v[{8+4*i}:{11+4*i}], v5, {ws()}, s{52+i} offen sc1")
    for i in range(8):
        e(f"buffer_load_dwordx4 v[{40+4*i}:{43+4*i}], v5, {ws()}, s{60+i} offen sc1")
    tagchk_init(e, 72)
    for n in range(16):
        e(f"s_waitcnt vmcnt({15-n})")
        tagchk(e, 72, 8 + 4 * n, 73, 74)
    spin_tail(e, 72, 50, "L_p4_retry", "L_p4_ok")
    e.label("L_p4_ok")
    for b in (8, 40):
        e(f"v_pk_add_f32 v[{b}:{b+1}], v[{b}:{b+1}], v[{b+4}:{b+5}]")
        e(f"v_pk_add_f32 v[{b+8}:{b+9}], v[{b+8}:{b+9}], v[{b+12}:{b+13}]")
        e(f"v_pk_add_f32 v[{b+16}:{b+17}], v[{b+16}:{b+17}], v[{b+20}:{b+21}]")
        e(f"v_pk_add_f32 v[{b+24}:{b+25}], v[{b+24}:{b+25}], v[{b+28}:{b+29}]")
        e(f"v_pk_add_f32 v[{b}:{b+1}], v[{b}:{b+1}], v[{b+8}:{b+9}]")
        e(f"v_pk_add_f32 v[{b+16}:{b+17}], v[{b+16}:{b+17}], v[{b+24}:{b+25}]")
        e(f"v_pk_add_f32 v[{b}:{b+1}], v[{b}:{b+1}], v[{b+16}:{b+17}]")
    vals = [8, 9, 40, 41]
    for sh in (8, 4, 2):
        for r in vals:
            e(f"v_add_f32_dpp v{r}, v{r}, v{r} row_ror:{sh} row_mask:0xf bank_mask:0xf")
    for swap in ("v_permlane16_swap_b32", "v_permlane32_swap_b32"):
        for k, r in enumerate(vals):
            e(f"v_mov_b32 v{12+k}, v{r}")
        for k, r in enumerate(vals):
            e(f"{swap} v{r}, v{12+k}")
        for k, r in enumerate(vals):
            e(f"v_add_f32 v{r}, v{r}, v{12+k}")
    rb2(e, 8, 9, 12, S_MASK)
    rb2(e, 40, 41, 12, S_MASK)
    e("s_mov_b32 s51, 0xc2fc0000")
    for r in (40, 41):
        e(f"v_mul_f32 v12, s{S_LOG2E}, v{r}")
        e("v_max_f32 v12, s51, v12")
        e("v_exp_f32 v12, -v12")
        e("v_add_f32 v12, 1.0, v12")
        e("v_rcp_f32 v13, v12")
        e("v_fma_f32 v14, -v12, v13, 1.0")
        e("v_fma_f32 v13, v14, v13, v13")
        e(f"v_mul_f32 v{r}, v{r}, v13")
    rb2(e, 40, 41, 12, S_MASK)
    e("v_mul_f32 v8, v8, v40")
    e("v_mul_f32 v9, v9, v41")
    rb2(e, 8, 9, 12, S_MASK)
    e("v_lshlrev_b32 v12, 16, v80")
    e(f"v_and_b32 v13, s{S_MASK}, v80")
    e("v_add_f32 v8, v12, v8")
    e("v_add_f32 v9, v13, v9")
    e("v_cvt_pk_bf16_f32 v8, v8, v9")
    e("s_mov_b64 exec, 3")
    e(f"buffer_store_dword v8, v4, {ws(SRD_B)}, s48 offen")
    e("s_mov_b64 exec, -1")


def build(stamps=False, prefetch=True):
    e = Emitter()
    st = St(e, stamps)
    e(kernel_head(NAME))
    e.label(NAME)
    e(f"s_cmp_ge_u32 s2, {NWG}")
    e("s_cbranch_scc1 L_exit")
    st()
    prologue(e, st, prefetch)
    phase1(e, st)
    phase2(e, st)
    phase3(e, st)
    phase4(e, st)
    e.label("L_end")
    st.flush(120, 48)
    e.label("L_exit")
    e("s_endpgm")
    e.label("L_code_end")
    e(kernel_desc(NAME, 128, 102))
    out = HEADER + f"; @launch grid=({NWG},1,1) block=(576,1,1) lds={LDS_BYTES}\n" + '.amdgcn_target "amdgcn-amd-amdhsa--gfx950"\n' + e.text()
    return out, st.n


if __name__ == "__main__":
    stamps = "--stamps" in sys.argv
    path = [a for a in sys.argv[1:] if not a.startswith("--")][0]
    txt, n = build(stamps, "--noprefetch" not in sys.argv)
    open(path, "w").write(txt)
    print("stamps:", n)
```

```python
import sys
from asmgen import Emitter
from common import *

NAME = "recurrent_scan__sliding_block_cached__swiglu_ffn__decode_kernel"
NWG = 256
P1T = 0x000000
PACC = 0x080000
PML = 0x100000
PARTS = 0x200000
PARTF = 0x400000
STAMP_OFF = 0x800000
WS_BYTES = 268435456
NG1 = 6656

L_XN = 0
L_RED1 = 2304
L_QL = 12288
L_OACC = 12800
L_ML = 20992
L_NONCE = 21248
L_XO = 21504
L_XD = 21632
L_REDS = 22528
L_REDF = 40960
LDS_BYTES = 59392

S_WAVE, S_MASK, S_NLO, S_NHI = 28, 29, 30, 31
SRD_A, SRD_B, SRD_WS, SRD_M = 32, 36, 40, 44
S_SCALE, S_LOG2E = 70, 71
NSTAMP = 14
S_ST = 72
SPIN_LIMIT = 400000


class St:
    def __init__(self, e, on):
        self.e, self.on, self.n = e, on, 0

    def __call__(self):
        if not self.on:
            return
        i = self.n
        self.n += 1
        assert i < NSTAMP
        self.e(f"s_memrealtime s[{S_ST+2*i}:{S_ST+2*i+1}]")

    def flush(self, vt, s_tmp):
        if not self.on:
            return
        e = self.e
        self()
        e("s_waitcnt lgkmcnt(0) vmcnt(0)")
        e("s_mov_b64 exec, 1")
        e(f"s_lshl_b32 s{s_tmp}, s2, 4")
        e(f"s_add_u32 s{s_tmp}, s{s_tmp}, s{S_WAVE}")
        e(f"s_lshl_b32 s{s_tmp}, s{s_tmp}, 7")
        e(f"s_add_u32 s{s_tmp}, s{s_tmp}, {STAMP_OFF}")
        e(f"v_mov_b32 v{vt+4}, 0")
        n = self.n + (self.n & 1)
        for i in range(0, n, 2):
            e(f"v_mov_b32 v{vt}, s{S_ST+2*i}")
            e(f"v_mov_b32 v{vt+1}, s{S_ST+2*i+1}")
            e(f"v_mov_b32 v{vt+2}, s{S_ST+2*i+2}")
            e(f"v_mov_b32 v{vt+3}, s{S_ST+2*i+3}")
            e(f"buffer_store_dwordx4 v[{vt}:{vt+3}], v{vt+4}, s[{SRD_WS}:{SRD_WS+3}], s{s_tmp} offen offset:{8*i}")
            e("s_nop 1")


def ws(r=SRD_WS):
    return f"s[{r}:{r+3}]"


def tagchk_init(e, vbad):
    e(f"v_mov_b32 v{vbad}, 0")


def tagchk(e, vbad, q, t0, t1):
    e(f"v_xor_b32 v{t0}, s{S_NLO}, v{q+2}")
    e(f"v_xor_b32 v{t1}, s{S_NHI}, v{q+3}")
    e(f"v_or3_b32 v{vbad}, v{vbad}, v{t0}, v{t1}")


def spin_tail(e, vbad, s_cnt, lbl_retry, lbl_ok):
    e(f"v_cmp_ne_u32 vcc, 0, v{vbad}")
    e("s_cmp_eq_u64 vcc, 0")
    e(f"s_cbranch_scc1 {lbl_ok}")
    e(f"s_add_u32 s{s_cnt}, s{s_cnt}, 1")
    e("s_sleep 1")
    e(f"s_cmp_lt_u32 s{s_cnt}, {SPIN_LIMIT}")
    e(f"s_cbranch_scc1 {lbl_retry}")


def set_tag(e, q):
    e(f"v_mov_b32 v{q+2}, s{S_NLO}")
    e(f"v_mov_b32 v{q+3}, s{S_NHI}")


def prologue(e, st, prefetch):
    e("s_getpc_b64 s[48:49]")
    e.label("L_pfbase")
    e(f"s_load_dwordx8 s[4:11], s[0:1], {KA_X}")
    e(f"s_load_dwordx2 s[12:13], s[0:1], {KA_WO}")
    e(f"s_load_dwordx8 s[16:23], s[0:1], {KA_WG}")
    e(f"s_load_dwordx4 s[24:27], s[0:1], {KA_DBG}")
    e("v_lshrrev_b32 v1, 6, v0")
    e("v_and_b32 v2, 63, v0")
    e(f"v_readfirstlane_b32 s{S_WAVE}, v1")
    if prefetch:
        e("v_lshlrev_b32 v3, 4, v0")
        e("s_mov_b32 s50, L_code_end-L_pfbase")
        e("s_mov_b32 s51, 0x20000")
        e("buffer_load_dwordx4 v[116:119], v3, s[48:51], 0 offen")
    e(f"s_mov_b32 s{S_MASK}, 0xffff0000")
    e(f"s_mov_b32 s{S_SCALE}, {C_SCALE}")
    e(f"s_mov_b32 s{S_LOG2E}, {C_LOG2E}")
    e("s_waitcnt lgkmcnt(0)")
    st()
    srd(e, SRD_WS, 26, WS_BYTES)
    srd(e, SRD_B, 24, 256)
    e("s_or_b32 s50, s2, s28")
    e("s_cmp_lg_u32 s50, 0")
    e("s_cbranch_scc1 L_nopub")
    e(f"s_memrealtime s[{S_NLO}:{S_NHI}]")
    e("s_waitcnt lgkmcnt(0)")
    e(f"s_or_b32 s{S_NLO}, s{S_NLO}, 1")
    e(f"v_mov_b32 v8, s{S_NLO}")
    e(f"v_mov_b32 v9, s{S_NHI}")
    e("v_mov_b32 v10, 0")
    e("s_mov_b64 exec, 1")
    e(f"buffer_store_dwordx2 v[8:9], v10, s[{SRD_B}:{SRD_B+3}], 0 offen sc1")
    e("s_mov_b64 exec, -1")
    e.label("L_nopub")


def nonce_fetch_issue(e, vq):
    e(f"v_mov_b32 v{vq+2}, 0")
    e(f"buffer_load_dwordx2 v[{vq}:{vq+1}], v{vq+2}, s[{SRD_M}:{SRD_M+3}], 0 offen sc1")


def nonce_finish(e, vq, tag):
    e("s_mov_b32 s50, 0")
    e(f"v_mov_b32 v{vq+2}, 0")
    e.label(f"L_nonce_chk{tag}")
    e("s_waitcnt vmcnt(0)")
    e(f"v_readfirstlane_b32 s{S_NLO}, v{vq}")
    e(f"v_readfirstlane_b32 s{S_NHI}, v{vq+1}")
    e(f"s_cmp_lg_u32 s{S_NLO}, 0")
    e(f"s_cbranch_scc1 L_nonce_ok{tag}")
    e("s_add_u32 s50, s50, 1")
    e("s_sleep 1")
    e(f"s_cmp_ge_u32 s50, {SPIN_LIMIT}")
    e(f"s_cbranch_scc1 L_nonce_ok{tag}")
    e(f"buffer_load_dwordx2 v[{vq}:{vq+1}], v{vq+2}, s[{SRD_M}:{SRD_M+3}], 0 offen sc1")
    e(f"s_branch L_nonce_chk{tag}")
    e.label(f"L_nonce_ok{tag}")
    e(f"ds_write_b64 v{vq+2}, v[{vq}:{vq+1}] offset:{L_NONCE}")


def nonce_read(e, vq):
    e(f"v_mov_b32 v{vq+2}, 0")
    e(f"ds_read_b64 v[{vq}:{vq+1}], v{vq+2} offset:{L_NONCE}")
    e("s_waitcnt lgkmcnt(0)")
    e(f"v_readfirstlane_b32 s{S_NLO}, v{vq}")
    e(f"v_readfirstlane_b32 s{S_NHI}, v{vq+1}")


def kv_issue(e, tag="a"):
    e(f"s_cmp_eq_u32 s{S_WAVE}, 0")
    e(f"s_cbranch_scc1 L_kv_skip{tag}")
    e("s_lshr_b32 s48, s2, 4")
    e("s_and_b32 s49, s2, 15")
    srd(e, SRD_A, 6, 33554432)
    srd(e, SRD_B, 8, 33554432)
    e(f"s_sub_u32 s50, s{S_WAVE}, 1")
    e("s_lshl_b32 s51, s48, 21")
    e("s_lshl_b32 s52, s49, 15")
    e("s_lshl_b32 s53, s50, 12")
    e("s_add_u32 s51, s51, s52")
    e("s_add_u32 s51, s51, s53")
    e("s_add_u32 s51, s51, 0x180000")
    e("v_and_b32 v3, 15, v2")
    e("v_lshlrev_b32 v3, 8, v3")
    e("v_lshrrev_b32 v5, 4, v2")
    e("v_lshlrev_b32 v4, 4, v5")
    e("v_add_u32 v3, v3, v4")
    e("v_lshlrev_b32 v4, 4, v2")
    for i in range(4):
        e(f"buffer_load_dwordx4 v[{12+4*i}:{15+4*i}], v3, {ws(SRD_A)}, s51 offen offset:{64*i} nt")
    for i in range(4):
        e(f"buffer_load_dwordx4 v[{28+4*i}:{31+4*i}], v4, {ws(SRD_B)}, s51 offen offset:{64*16*i} nt")
    e.label(f"L_kv_skip{tag}")


def phase1(e, st):
    XN, RED = L_XN, L_RED1
    e("s_cmp_ge_u32 s2, 208")
    e("s_cbranch_scc1 L_p1_skip")
    e("s_mov_b32 s48, 0")
    for lim in (52, 104, 156):
        e(f"s_cmp_ge_u32 s2, {lim}")
        e("s_addc_u32 s48, s48, 0")
    e("s_mul_i32 s49, s48, 52")
    e("s_sub_u32 s49, s2, s49")
    e("v_mul_u32_u24 v5, 18, v2")
    e("v_mul_u32_u24 v6, 36, v2")
    srd(e, SRD_M, 4, 1152)
    e(f"s_cmp_lg_u32 s{S_WAVE}, 0")
    e("s_cbranch_scc1 L_p1_a")
    for i in range(9):
        e(f"buffer_load_ushort v{8+i}, v5, {ws(SRD_M)}, 0 offen offset:{2*i}")
    e.label("L_p1_a")
    A = SRD_A
    e(f"s_mov_b32 s{A}, s10")
    e(f"s_mov_b32 s{A+1}, s11")
    e("s_mov_b32 s50, 8192")
    e("s_mov_b32 s52, 0")
    e("s_cmp_ge_u32 s49, 16")
    e(f"s_cselect_b32 s{A}, s16, s{A}")
    e(f"s_cselect_b32 s{A+1}, s17, s{A+1}")
    e("s_cselect_b32 s50, 9216, s50")
    e("s_cselect_b32 s52, 16, s52")
    e("s_cmp_ge_u32 s49, 34")
    e(f"s_cselect_b32 s{A}, s18, s{A}")
    e(f"s_cselect_b32 s{A+1}, s19, s{A+1}")
    e("s_cselect_b32 s52, 34, s52")
    e("s_sub_u32 s51, s49, s52")
    e(f"s_mul_i32 s{A+2}, s50, 576")
    e(f"s_mov_b32 s{A+3}, 0x20000")
    e("s_mul_i32 s54, s48, 144")
    e(f"s_lshl_b32 s55, s{S_WAVE}, 4")
    e("s_add_u32 s53, s54, s55")
    e("s_mul_i32 s54, s53, s50")
    e("s_lshl_b32 s55, s51, 9")
    e("s_add_u32 s54, s54, s55")
    for i in range(1, 8):
        e(f"s_add_u32 s{54+i}, s{54+i-1}, s50")
    e("s_lshl_b32 s62, s50, 3")
    e("v_and_b32 v3, 31, v2")
    e("v_lshlrev_b32 v3, 4, v3")
    e("v_lshrrev_b32 v4, 5, v2")
    e("v_mul_lo_u32 v4, v4, s62")
    e("v_add_u32 v3, v3, v4")
    e("s_barrier")
    for i in range(8):
        e(f"buffer_load_dwordx4 v[{32+4*i}:{35+4*i}], v3, {ws(A)}, s{54+i} offen nt")
    e("v_lshrrev_b32 v7, 5, v2")
    e("v_lshlrev_b32 v7, 5, v7")
    e("s_lshl_b32 s63, s53, 2")
    e("v_add_u32 v7, s63, v7")
    e("v_and_b32 v80, 31, v2")
    e("v_lshlrev_b32 v80, 5, v80")
    e("v_lshrrev_b32 v81, 5, v2")
    e("v_lshlrev_b32 v81, 4, v81")
    e("v_add_u32 v80, v80, v81")
    e(f"s_lshl_b32 s63, s{S_WAVE}, 10")
    e(f"s_add_u32 s63, s63, {RED}")
    e("v_add_u32 v80, s63, v80")
    e(f"s_cmp_lg_u32 s{S_WAVE}, 0")
    e("s_cbranch_scc1 L_p1_b")
    e("s_waitcnt vmcnt(8)")
    emit_ln(e, list(range(8, 17)), list(range(17, 24)) + [72], 63, S_MASK, 6, XN)
    srd(e, SRD_M, 24, 256)
    nonce_fetch_issue(e, 84)
    e("s_waitcnt lgkmcnt(0)")
    e.label("L_p1_b")
    st()
    e("s_barrier")
    e(f"ds_read_b128 v[24:27], v7 offset:{XN}")
    e(f"ds_read_b128 v[28:31], v7 offset:{XN+16}")
    e(f"s_cmp_lg_u32 s{S_WAVE}, 0")
    e("s_cbranch_scc1 L_p1_c")
    e("s_waitcnt vmcnt(0)")
    e.label("L_p1_c")
    for i in range(8):
        if i == 0:
            e("s_waitcnt lgkmcnt(0)")
        e(f"s_waitcnt vmcnt({7-i})")
        for j in range(4):
            d = 32 + 4 * i + j
            ta, tb = 72 + 2 * (j % 2), 73 + 2 * (j % 2)
            e(f"v_lshlrev_b32 v{ta}, 16, v{d}")
            e(f"v_and_b32 v{tb}, s{S_MASK}, v{d}")
            if i == 0:
                e(f"v_mul_f32 v{64+2*j}, v{24+i}, v{ta}")
                e(f"v_mul_f32 v{65+2*j}, v{24+i}, v{tb}")
            else:
                e(f"v_fmac_f32 v{64+2*j}, v{24+i}, v{ta}")
                e(f"v_fmac_f32 v{65+2*j}, v{24+i}, v{tb}")
    st()
    for j in range(4):
        e(f"v_permlane32_swap_b32 v{64+j}, v{68+j}")
    for j in range(4):
        e(f"v_add_f32 v{76+j}, v{64+j}, v{68+j}")
    e("ds_write_b128 v80, v[76:79]")
    e(f"s_cmp_lg_u32 s{S_WAVE}, 0")
    e("s_cbranch_scc1 L_p1_d")
    nonce_finish(e, 84, "a")
    e.label("L_p1_d")
    e("s_waitcnt lgkmcnt(0)")
    e("s_barrier")
    e(f"s_cmp_lg_u32 s{S_WAVE}, 0")
    e("s_cbranch_scc1 L_p1_e")
    e("v_lshlrev_b32 v1, 3, v2")
    for h in range(2):
        for s in range(9):
            e(f"ds_read_b64 v[{32+18*h+2*s}:{33+18*h+2*s}], v1 offset:{RED + 1024*s + 512*h}")
    e(f"s_mul_i32 s54, s48, {NG1}")
    e("s_lshl_b32 s55, s49, 7")
    e("s_add_u32 s54, s54, s55")
    e("s_lshl_b32 s54, s54, 4")
    if P1T:
        e(f"s_add_u32 s54, s54, {P1T}")
    e("v_lshlrev_b32 v1, 4, v2")
    set_tag(e, 76)
    set_tag(e, 80)
    for h in range(2):
        e(f"s_waitcnt lgkmcnt({9 - 9*h})")
        b = 32 + 18 * h
        e(f"v_pk_add_f32 v[{b}:{b+1}], v[{b}:{b+1}], v[{b+2}:{b+3}]")
        e(f"v_pk_add_f32 v[{b+4}:{b+5}], v[{b+4}:{b+5}], v[{b+6}:{b+7}]")
        e(f"v_pk_add_f32 v[{b+8}:{b+9}], v[{b+8}:{b+9}], v[{b+10}:{b+11}]")
        e(f"v_pk_add_f32 v[{b+12}:{b+13}], v[{b+12}:{b+13}], v[{b+14}:{b+15}]")
        e(f"v_pk_add_f32 v[{b}:{b+1}], v[{b}:{b+1}], v[{b+4}:{b+5}]")
        e(f"v_pk_add_f32 v[{b+8}:{b+9}], v[{b+8}:{b+9}], v[{b+12}:{b+13}]")
        e(f"v_pk_add_f32 v[{b}:{b+1}], v[{b}:{b+1}], v[{b+16}:{b+17}]")
        e(f"v_pk_add_f32 v[{76+4*h}:{77+4*h}], v[{b}:{b+1}], v[{b+8}:{b+9}]")
        e(f"buffer_store_dwordx4 v[{76+4*h}:{79+4*h}], v1, {ws()}, s54 offen offset:{1024*h} sc1")
    e("s_branch L_p1_e")
    e.label("L_p1_skip")
    e(f"s_cmp_lg_u32 s{S_WAVE}, 0")
    e("s_cbranch_scc1 L_p1_skip_b")
    srd(e, SRD_M, 24, 256)
    nonce_fetch_issue(e, 84)
    nonce_finish(e, 84, "b")
    e("s_waitcnt lgkmcnt(0)")
    e.label("L_p1_skip_b")
    e("s_barrier")
    e.label("L_p1_e")
    nonce_read(e, 84)
    st()


def od_issue(e):
    e("v_lshlrev_b32 v3, 4, v0")
    srd(e, SRD_A, 12, 4718592)
    e(f"s_mov_b32 s{SRD_B}, s20")
    e(f"s_mov_b32 s{SRD_B+1}, s21")
    e("s_mul_i32 s56, s2, 20736")
    e(f"s_add_u32 s{SRD_B+2}, s56, 20736")
    e(f"s_mov_b32 s{SRD_B+3}, 0x20000")
    e("s_mul_i32 s57, s2, 18432")
    e("s_add_u32 s58, s57, 9216")
    e("s_add_u32 s59, s56, 9216")
    e("s_add_u32 s60, s56, 18432")
    for n, (srd_, so) in enumerate(((SRD_A, 57), (SRD_A, 58), (SRD_B, 56), (SRD_B, 59), (SRD_B, 60))):
        e(f"buffer_load_dwordx4 v[{96+4*n}:{99+4*n}], v3, {ws(srd_)}, s{so} offen nt")


def phase2(e, st):
    QL, OACC, ML = L_QL, L_OACC, L_ML
    kv_issue(e)
    e("s_lshr_b32 s48, s2, 4")
    e("s_and_b32 s49, s2, 15")
    e(f"s_cmp_eq_u32 s{S_WAVE}, 0")
    e("s_cbranch_scc1 L_p2_helper")
    e(f"s_sub_u32 s50, s{S_WAVE}, 1")
    e("v_lshrrev_b32 v5, 4, v2")
    e("v_and_b32 v70, 7, v2")
    e("v_and_b32 v71, 1, v70")
    e("v_lshlrev_b32 v71, 4, v71")
    e("v_mov_b32 v72, 0xffff")
    e("v_lshlrev_b32 v72, v71, v72")
    e("v_lshrrev_b32 v70, 1, v70")
    for k in range(4):
        e(f"v_cmp_eq_u32 vcc, {k}, v70")
        e(f"v_cndmask_b32 v{8+k}, 0, v72, vcc")
    e("v_bfe_u32 v6, v2, 3, 1")
    e("v_lshlrev_b32 v6, 6, v6")
    e("v_lshlrev_b32 v70, 2, v5")
    e("v_add_u32 v6, v6, v70")
    e("v_bfe_u32 v73, v2, 2, 1")
    e("v_lshlrev_b32 v73, 8, v73")
    e("v_lshlrev_b32 v70, 4, v5")
    e("v_add_u32 v73, v73, v70")
    e("v_lshrrev_b32 v7, 5, v2")
    e("v_lshlrev_b32 v7, 9, v7")
    e("v_and_b32 v70, 15, v2")
    e("v_lshlrev_b32 v70, 5, v70")
    e("v_add_u32 v7, v7, v70")
    e("v_bfe_u32 v70, v2, 4, 1")
    e("v_lshlrev_b32 v71, 4, v70")
    e("v_add_u32 v7, v7, v71")
    e("s_lshl_b32 s52, s50, 10")
    e(f"s_add_u32 s52, s52, {OACC}")
    e("v_add_u32 v7, s52, v7")
    e("v_lshlrev_b32 v69, 3, v70")
    e("s_lshl_b32 s52, s50, 4")
    e(f"s_add_u32 s52, s52, {ML}")
    e("v_add_u32 v69, s52, v69")
    e("s_barrier")
    st()
    for i in range(4):
        e(f"ds_read_b128 v[{44+4*i}:{47+4*i}], v73 offset:{QL + 64*i}")
    od_issue(e)
    e("s_waitcnt vmcnt(9) lgkmcnt(0)")
    st()
    for i in range(4):
        c = "0" if i == 0 else "v[60:63]"
        e(f"v_mfma_f32_16x16x32_bf16 v[60:63], v[{44+4*i}:{47+4*i}], v[{12+4*i}:{15+4*i}], {c}")
    e("v_cvt_pk_bf16_f32 v70, v60, v60")
    e("v_lshlrev_b32 v70, 16, v70")
    e(f"v_mul_f32 v70, s{S_SCALE}, v70")
    rb(e, 70, 71)
    e("v_mov_b32 v74, v70")
    row_allreduce(e, "v_max_f32", 74)
    e("v_sub_f32 v70, v70, v74")
    e(f"v_mul_f32 v70, s{S_LOG2E}, v70")
    e("v_exp_f32 v70, v70")
    e("v_mov_b32 v75, v70")
    row_allreduce(e, "v_add_f32", 75)
    e("v_cvt_pk_bf16_f32 v71, v70, v70")
    e("ds_write_b64 v69, v[74:75]")
    for i in range(4):
        e(f"ds_bpermute_b32 v{76+i}, v6, v71 offset:{16*i}")
    for i in range(4):
        e(f"s_waitcnt vmcnt({8-i}) lgkmcnt({3-i})")
        for k in range(4):
            e(f"v_and_b32 v{80+4*(i%2)+k}, v{8+k}, v{76+i}")
        c = "0" if i == 0 else "v[64:67]"
        a = 80 + 4 * (i % 2)
        e(f"v_mfma_f32_16x16x32_bf16 v[64:67], v[{a}:{a+3}], v[{28+4*i}:{31+4*i}], {c}")
    e("ds_write_b128 v7, v[64:67]")
    e("s_waitcnt lgkmcnt(0)")
    st()
    e("s_barrier")
    e("s_branch L_p2_comb")
    e.label("L_p2_helper")
    e("v_lshlrev_b32 v3, 4, v2")
    e("s_lshl_b32 s50, s48, 11")
    if P1T:
        e(f"s_add_u32 s50, s50, {P1T}")
    e("s_mov_b32 s51, 0")
    e.label("L_p2_retry")
    for ks in range(4):
        e(f"s_add_u32 s{52+ks}, s50, {ks * NG1 * 16}")
        e(f"buffer_load_dwordx4 v[{12+8*ks}:{15+8*ks}], v3, {ws()}, s{52+ks} offen sc1")
        e(f"buffer_load_dwordx4 v[{16+8*ks}:{19+8*ks}], v3, {ws()}, s{52+ks} offen offset:1024 sc1")
    tagchk_init(e, 44)
    for n in range(8):
        e(f"s_waitcnt vmcnt({7-n})")
        tagchk(e, 44, 12 + 4 * n, 45, 46)
    spin_tail(e, 44, 51, "L_p2_retry", "L_p2_ok")
    e.label("L_p2_ok")
    for h in range(2):
        b = 12 + 4 * h
        e(f"v_pk_add_f32 v[{b}:{b+1}], v[{b}:{b+1}], v[{b+8}:{b+9}]")
        e(f"v_pk_add_f32 v[{b+16}:{b+17}], v[{b+16}:{b+17}], v[{b+24}:{b+25}]")
        e(f"v_pk_add_f32 v[{b}:{b+1}], v[{b}:{b+1}], v[{b+16}:{b+17}]")
        e(f"v_cvt_pk_bf16_f32 v{48+h}, v{b}, v{b+1}")
    e("v_lshlrev_b32 v4, 2, v2")
    e(f"ds_write_b32 v4, v48 offset:{QL}")
    e(f"ds_write_b32 v4, v49 offset:{QL+256}")
    e("s_waitcnt lgkmcnt(0)")
    e("s_barrier")
    od_issue(e)
    e("s_barrier")
    e.label("L_p2_comb")
    e(f"s_cmp_ge_u32 s{S_WAVE}, 2")
    e("s_cbranch_scc1 L_p2_end")
    e(f"s_lshl_b32 s50, s{S_WAVE}, 3")
    e(f"s_add_u32 s50, s50, {ML}")
    e("v_mov_b32 v3, s50")
    e("v_lshlrev_b32 v4, 3, v2")
    e(f"s_lshl_b32 s50, s{S_WAVE}, 9")
    e("v_add_u32 v4, s50, v4")
    for w in range(8):
        e(f"ds_read_b64 v[{12+2*w}:{13+2*w}], v3 offset:{16*w}")
    for w in range(8):
        e(f"ds_read_b64 v[{28+2*w}:{29+2*w}], v4 offset:{OACC + 1024*w}")
    e("s_lshl_b32 s51, s48, 1")
    e(f"s_add_u32 s51, s51, s{S_WAVE}")
    e("s_lshl_b32 s51, s51, 4")
    e("s_add_u32 s51, s51, s49")
    e("s_lshl_b32 s52, s51, 10")
    e(f"s_add_u32 s52, s52, {PACC}")
    e("s_lshl_b32 s53, s51, 7")
    e(f"s_add_u32 s53, s53, {PML}")
    e("s_waitcnt lgkmcnt(8)")
    e("v_max3_f32 v48, v12, v14, v16")
    e("v_max3_f32 v48, v48, v18, v20")
    e("v_max3_f32 v48, v48, v22, v24")
    e("v_max_f32 v48, v48, v26")
    for w in range(8):
        e(f"v_sub_f32 v{52+w}, v{12+2*w}, v48")
    for w in range(8):
        e(f"v_mul_f32 v{52+w}, s{S_LOG2E}, v{52+w}")
    for w in range(8):
        e(f"v_exp_f32 v{52+w}, v{52+w}")
    e("v_mul_f32 v49, v52, v13")
    for w in range(1, 8):
        e(f"v_fmac_f32 v49, v{52+w}, v{13+2*w}")
    set_tag(e, 48)
    e("s_waitcnt lgkmcnt(0)")
    e("v_mul_f32 v60, v52, v28")
    e("v_mul_f32 v61, v52, v29")
    for w in range(1, 8):
        e(f"v_fmac_f32 v60, v{52+w}, v{28+2*w}")
        e(f"v_fmac_f32 v61, v{52+w}, v{29+2*w}")
    set_tag(e, 60)
    e("v_lshlrev_b32 v6, 4, v2")
    e(f"buffer_store_dwordx4 v[60:63], v6, {ws()}, s52 offen sc1")
    e("s_mov_b64 s[54:55], exec")
    e("s_mov_b64 exec, 1")
    e(f"buffer_store_dwordx4 v[48:51], v6, {ws()}, s53 offen sc1")
    e("s_mov_b64 exec, s[54:55]")
    e.label("L_p2_end")
    st()


def phase3(e, st):
    e("v_mul_u32_u24 v4, 911, v0")
    e("v_lshrrev_b32 v4, 16, v4")
    e("v_mul_u32_u24 v5, 72, v4")
    e("v_sub_u32 v5, v0, v5")
    e(f"s_cmp_lg_u32 s{S_WAVE}, 0")
    e("s_cbranch_scc1 L_p3_a")
    e("s_lshr_b32 s53, s2, 3")
    e("s_and_b32 s54, s2, 7")
    e("v_and_b32 v6, 15, v2")
    e("v_lshrrev_b32 v7, 4, v2")
    e("v_lshlrev_b32 v8, 10, v6")
    e("v_lshl_add_u32 v8, v7, 4, v8")
    e("s_lshl_b32 s55, s53, 14")
    e("s_lshl_b32 s56, s54, 7")
    e("s_add_u32 s55, s55, s56")
    e(f"s_add_u32 s55, s55, {PACC}")
    e("v_lshlrev_b32 v9, 7, v6")
    e("s_lshl_b32 s56, s53, 11")
    e(f"s_add_u32 s56, s56, {PML}")
    e("v_min_u32 v10, 8, v2")
    e("v_lshlrev_b32 v11, 4, v10")
    e("s_mul_i32 s57, s2, 144")
    e("s_mov_b32 s58, 0")
    e.label("L_p3_retry")
    e(f"buffer_load_dwordx4 v[12:15], v9, {ws()}, s56 offen sc1")
    e(f"buffer_load_dwordx4 v[16:19], v8, {ws()}, s55 offen sc1")
    e(f"buffer_load_dwordx4 v[20:23], v8, {ws()}, s55 offen offset:64 sc1")
    for ks in range(4):
        e(f"s_add_u32 s59, s57, {P1T + (ks*NG1 + 2048)*16}")
        e(f"buffer_load_dwordx4 v[{32+8*ks}:{35+8*ks}], v11, {ws()}, s59 offen sc1")
        e(f"s_add_u32 s60, s57, {P1T + (ks*NG1 + 4352)*16}")
        e(f"buffer_load_dwordx4 v[{36+8*ks}:{39+8*ks}], v11, {ws()}, s60 offen sc1")
    tagchk_init(e, 24)
    quads = [12, 16, 20] + [32 + 4 * i for i in range(8)]
    for n, q in enumerate(quads):
        e(f"s_waitcnt vmcnt({10-n})")
        tagchk(e, 24, q, 25, 26)
    spin_tail(e, 24, 58, "L_p3_retry", "L_p3_ok")
    e.label("L_p3_ok")
    st()
    e("v_mov_b32 v14, v12")
    row_allreduce(e, "v_max_f32", 14)
    e("v_sub_f32 v12, v12, v14")
    e(f"v_mul_f32 v12, s{S_LOG2E}, v12")
    e("v_exp_f32 v12, v12")
    e("v_mul_f32 v13, v12, v13")
    row_allreduce(e, "v_add_f32", 13)
    e("v_rcp_f32 v14, v13")
    e("v_fma_f32 v15, -v13, v14, 1.0")
    e("v_fma_f32 v14, v15, v14, v14")
    e("v_mul_f32 v12, v12, v14")
    vals = [16, 17, 20, 21]
    for r in vals:
        e(f"v_mul_f32 v{r}, v12, v{r}")
    for sh in (8, 4, 2, 1):
        for r in vals:
            e(f"v_add_f32_dpp v{r}, v{r}, v{r} row_ror:{sh} row_mask:0xf bank_mask:0xf")
    rb2(e, 16, 17, 24, S_MASK)
    rb2(e, 20, 21, 24, S_MASK)
    e("v_lshlrev_b32 v7, 4, v7")
    e(f"ds_write_b32 v7, v16 offset:{L_XO}")
    e(f"ds_write_b32 v7, v17 offset:{L_XO+8}")
    e(f"ds_write_b32 v7, v20 offset:{L_XO+4}")
    e(f"ds_write_b32 v7, v21 offset:{L_XO+12}")
    e("v_pk_add_f32 v[32:33], v[32:33], v[40:41]")
    e("v_pk_add_f32 v[48:49], v[48:49], v[56:57]")
    e("v_pk_add_f32 v[32:33], v[32:33], v[48:49]")
    e("v_pk_add_f32 v[36:37], v[36:37], v[44:45]")
    e("v_pk_add_f32 v[52:53], v[52:53], v[60:61]")
    e("v_pk_add_f32 v[36:37], v[36:37], v[52:53]")
    rb2(e, 32, 33, 24, S_MASK)
    rb2(e, 36, 37, 24, S_MASK)
    e("s_mov_b32 s59, 0xc2fc0000")
    for r in (32, 33):
        e(f"v_mul_f32 v24, s{S_LOG2E}, v{r}")
        e("v_max_f32 v24, s59, v24")
        e("v_exp_f32 v24, -v24")
        e("v_add_f32 v24, 1.0, v24")
        e("v_rcp_f32 v25, v24")
        e("v_fma_f32 v26, -v24, v25, 1.0")
        e("v_fma_f32 v25, v26, v25, v25")
        e(f"v_mul_f32 v{r}, v{r}, v25")
    rb2(e, 32, 33, 24, S_MASK)
    e("v_mul_f32 v32, v32, v36")
    e("v_mul_f32 v33, v33, v37")
    rb2(e, 32, 33, 24, S_MASK)
    e("v_lshlrev_b32 v24, 1, v10")
    e("v_and_b32 v25, 7, v24")
    e("v_lshlrev_b32 v25, 4, v25")
    e("v_lshrrev_b32 v26, 3, v24")
    e("v_lshl_add_u32 v25, v26, 2, v25")
    e(f"ds_write_b32 v25, v32 offset:{L_XD}")
    e(f"ds_write_b32 v25, v33 offset:{L_XD+16}")
    e("v_subrev_u32 v24, 16, v2")
    e("v_lshlrev_b32 v24, 4, v24")
    e("v_mov_b32 v25, 0")
    e("v_cmp_gt_u32 vcc, 8, v24")
    e("v_subrev_u32 v26, 18, v2")
    e("v_cmp_gt_u32 vcc, 6, v26")
    e("s_and_saveexec_b64 s[60:61], vcc")
    e(f"ds_write_b32 v24, v25 offset:{L_XD+8}")
    e("s_mov_b64 exec, s[60:61]")
    e("s_waitcnt lgkmcnt(0)")
    e.label("L_p3_a")
    e("s_barrier")
    st()
    e("v_lshlrev_b32 v6, 3, v4")
    e(f"ds_read_b64 v[24:25], v6 offset:{L_XO}")
    e("v_lshlrev_b32 v6, 4, v4")
    e(f"ds_read_b96 v[28:30], v6 offset:{L_XD}")
    e("v_mul_u32_u24 v8, 2304, v4")
    e("v_lshl_add_u32 v8, v5, 5, v8")
    plan = [(24, 52, True), (25, 52, False), (28, 60, True), (29, 60, False), (30, 60, False)]
    for n, (xv, acc, first) in enumerate(plan):
        if n == 0:
            e("s_waitcnt vmcnt(0) lgkmcnt(0)")
        for j in range(4):
            d = 96 + 4 * n + j
            ta, tb = 68 + 2 * (j % 2), 69 + 2 * (j % 2)
            e(f"v_lshlrev_b32 v{ta}, 16, v{d}")
            e(f"v_and_b32 v{tb}, s{S_MASK}, v{d}")
            if first:
                e(f"v_mul_f32 v{acc+2*j}, v{xv}, v{ta}")
                e(f"v_mul_f32 v{acc+2*j+1}, v{xv}, v{tb}")
            else:
                e(f"v_fmac_f32 v{acc+2*j}, v{xv}, v{ta}")
                e(f"v_fmac_f32 v{acc+2*j+1}, v{xv}, v{tb}")
    e(f"ds_write_b128 v8, v[52:55] offset:{L_REDS}")
    e(f"ds_write_b128 v8, v[56:59] offset:{L_REDS+16}")
    e(f"ds_write_b128 v8, v[60:63] offset:{L_REDF}")
    e(f"ds_write_b128 v8, v[64:67] offset:{L_REDF+16}")
    e("s_waitcnt lgkmcnt(0)")
    st()
    e("s_barrier")
    e("v_cmp_le_u32 vcc, 288, v0")
    e("v_mov_b32 v6, 0")
    e("v_mov_b32 v7, 288")
    e("v_cndmask_b32 v7, 0, v7, vcc")
    e("v_sub_u32 v6, v0, v7")
    e(f"v_mov_b32 v9, {L_REDF - L_REDS}")
    e("v_cndmask_b32 v9, 0, v9, vcc")
    e("v_lshl_add_u32 v9, v6, 3, v9")
    for r in range(8):
        e(f"ds_read_b64 v[{32+2*r}:{33+2*r}], v9 offset:{L_REDS + 2304*r}")
    e(f"v_mov_b32 v10, {PARTF - PARTS}")
    e("v_cndmask_b32 v10, 0, v10, vcc")
    e("v_lshl_add_u32 v10, v6, 4, v10")
    e("s_mul_i32 s48, s2, 4608")
    e(f"s_add_u32 s48, s48, {PARTS}")
    e("s_waitcnt lgkmcnt(4)")
    e("v_pk_add_f32 v[32:33], v[32:33], v[34:35]")
    e("v_pk_add_f32 v[36:37], v[36:37], v[38:39]")
    e("v_pk_add_f32 v[32:33], v[32:33], v[36:37]")
    e("s_waitcnt lgkmcnt(0)")
    e("v_pk_add_f32 v[40:41], v[40:41], v[42:43]")
    e("v_pk_add_f32 v[44:45], v[44:45], v[46:47]")
    e("v_pk_add_f32 v[40:41], v[40:41], v[44:45]")
    e("v_pk_add_f32 v[48:49], v[32:33], v[40:41]")
    set_tag(e, 48)
    e(f"buffer_store_dwordx4 v[48:51], v10, {ws()}, s48 offen sc1")
    st()


def phase4(e, st):
    e("s_cmp_ge_u32 s2, 144")
    e("s_cbranch_scc1 L_end")
    e(f"s_cmp_lg_u32 s{S_WAVE}, 0")
    e("s_cbranch_scc1 L_end")
    srd(e, SRD_A, 4, 1152)
    srd(e, SRD_B, 22, 1152)
    e("v_and_b32 v3, 1, v2")
    e("v_lshlrev_b32 v4, 2, v3")
    e("s_lshl_b32 s48, s2, 3")
    e(f"buffer_load_dword v80, v4, {ws(SRD_A)}, s48 offen")
    e("v_lshrrev_b32 v5, 1, v2")
    e("v_mul_u32_u24 v5, 4608, v5")
    e("v_lshl_add_u32 v5, v3, 4, v5")
    e("s_lshl_b32 s49, s2, 5")
    e("s_mov_b32 s50, 0")
    for i in range(8):
        e(f"s_add_u32 s{52+i}, s49, {PARTS + i*32*4608}")
        e(f"s_add_u32 s{60+i}, s49, {PARTF + i*32*4608}")
    e.label("L_p4_retry")
    for i in range(8):
        e(f"buffer_load_dwordx4 v[{8+4*i}:{11+4*i}], v5, {ws()}, s{52+i} offen sc1")
    for i in range(8):
        e(f"buffer_load_dwordx4 v[{40+4*i}:{43+4*i}], v5, {ws()}, s{60+i} offen sc1")
    tagchk_init(e, 72)
    for n in range(16):
        e(f"s_waitcnt vmcnt({15-n})")
        tagchk(e, 72, 8 + 4 * n, 73, 74)
    spin_tail(e, 72, 50, "L_p4_retry", "L_p4_ok")
    e.label("L_p4_ok")
    for b in (8, 40):
        e(f"v_pk_add_f32 v[{b}:{b+1}], v[{b}:{b+1}], v[{b+4}:{b+5}]")
        e(f"v_pk_add_f32 v[{b+8}:{b+9}], v[{b+8}:{b+9}], v[{b+12}:{b+13}]")
        e(f"v_pk_add_f32 v[{b+16}:{b+17}], v[{b+16}:{b+17}], v[{b+20}:{b+21}]")
        e(f"v_pk_add_f32 v[{b+24}:{b+25}], v[{b+24}:{b+25}], v[{b+28}:{b+29}]")
        e(f"v_pk_add_f32 v[{b}:{b+1}], v[{b}:{b+1}], v[{b+8}:{b+9}]")
        e(f"v_pk_add_f32 v[{b+16}:{b+17}], v[{b+16}:{b+17}], v[{b+24}:{b+25}]")
        e(f"v_pk_add_f32 v[{b}:{b+1}], v[{b}:{b+1}], v[{b+16}:{b+17}]")
    vals = [8, 9, 40, 41]
    for sh in (8, 4, 2):
        for r in vals:
            e(f"v_add_f32_dpp v{r}, v{r}, v{r} row_ror:{sh} row_mask:0xf bank_mask:0xf")
    for swap in ("v_permlane16_swap_b32", "v_permlane32_swap_b32"):
        for k, r in enumerate(vals):
            e(f"v_mov_b32 v{12+k}, v{r}")
        for k, r in enumerate(vals):
            e(f"{swap} v{r}, v{12+k}")
        for k, r in enumerate(vals):
            e(f"v_add_f32 v{r}, v{r}, v{12+k}")
    rb2(e, 8, 9, 12, S_MASK)
    rb2(e, 40, 41, 12, S_MASK)
    e("s_mov_b32 s51, 0xc2fc0000")
    for r in (40, 41):
        e(f"v_mul_f32 v12, s{S_LOG2E}, v{r}")
        e("v_max_f32 v12, s51, v12")
        e("v_exp_f32 v12, -v12")
        e("v_add_f32 v12, 1.0, v12")
        e("v_rcp_f32 v13, v12")
        e("v_fma_f32 v14, -v12, v13, 1.0")
        e("v_fma_f32 v13, v14, v13, v13")
        e(f"v_mul_f32 v{r}, v{r}, v13")
    rb2(e, 40, 41, 12, S_MASK)
    e("v_mul_f32 v8, v8, v40")
    e("v_mul_f32 v9, v9, v41")
    rb2(e, 8, 9, 12, S_MASK)
    e("v_lshlrev_b32 v12, 16, v80")
    e(f"v_and_b32 v13, s{S_MASK}, v80")
    e("v_add_f32 v8, v12, v8")
    e("v_add_f32 v9, v13, v9")
    e("v_cvt_pk_bf16_f32 v8, v8, v9")
    e("s_mov_b64 exec, 3")
    e(f"buffer_store_dword v8, v4, {ws(SRD_B)}, s48 offen")
    e("s_mov_b64 exec, -1")


def build(stamps=False, prefetch=True):
    e = Emitter()
    st = St(e, stamps)
    e(kernel_head(NAME))
    e.label(NAME)
    e(f"s_cmp_ge_u32 s2, {NWG}")
    e("s_cbranch_scc1 L_exit")
    st()
    prologue(e, st, prefetch)
    phase1(e, st)
    phase2(e, st)
    phase3(e, st)
    phase4(e, st)
    e.label("L_end")
    st.flush(120, 48)
    e.label("L_exit")
    e("s_endpgm")
    e.label("L_code_end")
    e(kernel_desc(NAME, 128, 102))
    out = HEADER + f"; @launch grid=({NWG},1,1) block=(576,1,1) lds={LDS_BYTES}\n" + '.amdgcn_target "amdgcn-amd-amdhsa--gfx950"\n' + e.text()
    return out, st.n


if __name__ == "__main__":
    stamps = "--stamps" in sys.argv
    path = [a for a in sys.argv[1:] if not a.startswith("--")][0]
    txt, n = build(stamps, "--noprefetch" not in sys.argv)
    open(path, "w").write(txt)
    print("stamps:", n)
```

```python
import sys
from asmgen import Emitter
from common import *

NAME = "recurrent_scan__sliding_block_cached__swiglu_ffn__decode_kernel"
NWG = 256
P1T = 0x000000
PACC = 0x080000
PML = 0x100000
PARTS = 0x200000
PARTF = 0x400000
STAMP_OFF = 0x800000
WS_BYTES = 268435456
NG1 = 6656

L_XN = 0
L_RED1 = 2304
L_QL = 12288
L_OACC = 12800
L_ML = 20992
L_NONCE = 21248
L_XO = 21504
L_XD = 21632
L_REDS = 22528
L_REDF = 40960
LDS_BYTES = 59392

S_WAVE, S_MASK, S_NLO, S_NHI = 28, 29, 30, 31
SRD_A, SRD_B, SRD_WS, SRD_M = 32, 36, 40, 44
S_SCALE, S_LOG2E = 70, 71
NSTAMP = 14
S_ST = 72
SPIN_LIMIT = 400000


class St:
    def __init__(self, e, on):
        self.e, self.on, self.n = e, on, 0

    def __call__(self):
        if not self.on:
            return
        i = self.n
        self.n += 1
        assert i < NSTAMP
        self.e(f"s_memrealtime s[{S_ST+2*i}:{S_ST+2*i+1}]")

    def flush(self, vt, s_tmp):
        if not self.on:
            return
        e = self.e
        self()
        e("s_waitcnt lgkmcnt(0) vmcnt(0)")
        e("s_mov_b64 exec, 1")
        e(f"s_lshl_b32 s{s_tmp}, s2, 4")
        e(f"s_add_u32 s{s_tmp}, s{s_tmp}, s{S_WAVE}")
        e(f"s_lshl_b32 s{s_tmp}, s{s_tmp}, 7")
        e(f"s_add_u32 s{s_tmp}, s{s_tmp}, {STAMP_OFF}")
        e(f"v_mov_b32 v{vt+4}, 0")
        n = self.n + (self.n & 1)
        for i in range(0, n, 2):
            e(f"v_mov_b32 v{vt}, s{S_ST+2*i}")
            e(f"v_mov_b32 v{vt+1}, s{S_ST+2*i+1}")
            e(f"v_mov_b32 v{vt+2}, s{S_ST+2*i+2}")
            e(f"v_mov_b32 v{vt+3}, s{S_ST+2*i+3}")
            e(f"buffer_store_dwordx4 v[{vt}:{vt+3}], v{vt+4}, s[{SRD_WS}:{SRD_WS+3}], s{s_tmp} offen offset:{8*i}")
            e("s_nop 1")


def ws(r=SRD_WS):
    return f"s[{r}:{r+3}]"


def tagchk_init(e, vbad):
    e(f"v_mov_b32 v{vbad}, 0")


def tagchk(e, vbad, q, t0, t1):
    e(f"v_xor_b32 v{t0}, s{S_NLO}, v{q+2}")
    e(f"v_xor_b32 v{t1}, s{S_NHI}, v{q+3}")
    e(f"v_or3_b32 v{vbad}, v{vbad}, v{t0}, v{t1}")


def spin_tail(e, vbad, s_cnt, lbl_retry, lbl_ok):
    e(f"v_cmp_ne_u32 vcc, 0, v{vbad}")
    e("s_cmp_eq_u64 vcc, 0")
    e(f"s_cbranch_scc1 {lbl_ok}")
    e(f"s_add_u32 s{s_cnt}, s{s_cnt}, 1")
    e("s_sleep 1")
    e(f"s_cmp_lt_u32 s{s_cnt}, {SPIN_LIMIT}")
    e(f"s_cbranch_scc1 {lbl_retry}")


def set_tag(e, q):
    e(f"v_mov_b32 v{q+2}, s{S_NLO}")
    e(f"v_mov_b32 v{q+3}, s{S_NHI}")


def dbg_time(e, slot):
    e(f"s_cmp_lg_u32 s{S_WAVE}, 0")
    e(f"s_cbranch_scc1 L_dt{slot}")
    e("s_and_b32 s68, s2, 15")
    e("s_cmp_lg_u32 s68, 0")
    e(f"s_cbranch_scc1 L_dt{slot}")
    e("s_memrealtime s[68:69]")
    e("s_waitcnt lgkmcnt(0)")
    e(f"s_sub_u32 s68, s68, s{S_NLO}")
    srd(e, 64, 24, 256)
    e("v_mov_b32 v120, s68")
    e("v_mov_b32 v121, 0")
    e("s_mov_b64 s[68:69], exec")
    e("s_mov_b64 exec, 1")
    e(f"buffer_atomic_umax v120, v121, s[64:67], 0 offen offset:{8+4*slot}")
    e("s_mov_b64 exec, s[68:69]")
    e.label(f"L_dt{slot}")

def prologue(e, st, prefetch):
    e("s_getpc_b64 s[48:49]")
    e.label("L_pfbase")
    e(f"s_load_dwordx8 s[4:11], s[0:1], {KA_X}")
    e(f"s_load_dwordx2 s[12:13], s[0:1], {KA_WO}")
    e(f"s_load_dwordx8 s[16:23], s[0:1], {KA_WG}")
    e(f"s_load_dwordx4 s[24:27], s[0:1], {KA_DBG}")
    e("v_lshrrev_b32 v1, 6, v0")
    e("v_and_b32 v2, 63, v0")
    e(f"v_readfirstlane_b32 s{S_WAVE}, v1")
    if prefetch:
        e("v_lshlrev_b32 v3, 4, v0")
        e("s_mov_b32 s50, L_code_end-L_pfbase")
        e("s_mov_b32 s51, 0x20000")
        e("buffer_load_dwordx4 v[116:119], v3, s[48:51], 0 offen")
    e(f"s_mov_b32 s{S_MASK}, 0xffff0000")
    e(f"s_mov_b32 s{S_SCALE}, {C_SCALE}")
    e(f"s_mov_b32 s{S_LOG2E}, {C_LOG2E}")
    e("s_waitcnt lgkmcnt(0)")
    st()
    srd(e, SRD_WS, 26, WS_BYTES)
    srd(e, SRD_B, 24, 256)
    e("s_or_b32 s50, s2, s28")
    e("s_cmp_lg_u32 s50, 0")
    e("s_cbranch_scc1 L_nopub")
    e(f"s_memrealtime s[{S_NLO}:{S_NHI}]")
    e("s_waitcnt lgkmcnt(0)")
    e(f"s_or_b32 s{S_NLO}, s{S_NLO}, 1")
    e(f"v_mov_b32 v8, s{S_NLO}")
    e(f"v_mov_b32 v9, s{S_NHI}")
    e("v_mov_b32 v10, 0")
    e("s_mov_b64 exec, 1")
    e(f"buffer_store_dwordx2 v[8:9], v10, s[{SRD_B}:{SRD_B+3}], 0 offen sc1")
    e("s_mov_b64 exec, -1")
    e.label("L_nopub")


def nonce_fetch_issue(e, vq):
    e(f"v_mov_b32 v{vq+2}, 0")
    e(f"buffer_load_dwordx2 v[{vq}:{vq+1}], v{vq+2}, s[{SRD_M}:{SRD_M+3}], 0 offen sc1")


def nonce_finish(e, vq, tag):
    e("s_mov_b32 s50, 0")
    e(f"v_mov_b32 v{vq+2}, 0")
    e.label(f"L_nonce_chk{tag}")
    e("s_waitcnt vmcnt(0)")
    e(f"v_readfirstlane_b32 s{S_NLO}, v{vq}")
    e(f"v_readfirstlane_b32 s{S_NHI}, v{vq+1}")
    e(f"s_cmp_lg_u32 s{S_NLO}, 0")
    e(f"s_cbranch_scc1 L_nonce_ok{tag}")
    e("s_add_u32 s50, s50, 1")
    e("s_sleep 1")
    e(f"s_cmp_ge_u32 s50, {SPIN_LIMIT}")
    e(f"s_cbranch_scc1 L_nonce_ok{tag}")
    e(f"buffer_load_dwordx2 v[{vq}:{vq+1}], v{vq+2}, s[{SRD_M}:{SRD_M+3}], 0 offen sc1")
    e(f"s_branch L_nonce_chk{tag}")
    e.label(f"L_nonce_ok{tag}")
    e(f"ds_write_b64 v{vq+2}, v[{vq}:{vq+1}] offset:{L_NONCE}")


def nonce_read(e, vq):
    e(f"v_mov_b32 v{vq+2}, 0")
    e(f"ds_read_b64 v[{vq}:{vq+1}], v{vq+2} offset:{L_NONCE}")
    e("s_waitcnt lgkmcnt(0)")
    e(f"v_readfirstlane_b32 s{S_NLO}, v{vq}")
    e(f"v_readfirstlane_b32 s{S_NHI}, v{vq+1}")


def kv_issue(e, tag="a"):
    e(f"s_cmp_eq_u32 s{S_WAVE}, 0")
    e(f"s_cbranch_scc1 L_kv_skip{tag}")
    e("s_lshr_b32 s48, s2, 4")
    e("s_and_b32 s49, s2, 15")
    srd(e, SRD_A, 6, 33554432)
    srd(e, SRD_B, 8, 33554432)
    e(f"s_sub_u32 s50, s{S_WAVE}, 1")
    e("s_lshl_b32 s51, s48, 21")
    e("s_lshl_b32 s52, s49, 15")
    e("s_lshl_b32 s53, s50, 12")
    e("s_add_u32 s51, s51, s52")
    e("s_add_u32 s51, s51, s53")
    e("s_add_u32 s51, s51, 0x180000")
    e("v_and_b32 v3, 15, v2")
    e("v_lshlrev_b32 v3, 8, v3")
    e("v_lshrrev_b32 v5, 4, v2")
    e("v_lshlrev_b32 v4, 4, v5")
    e("v_add_u32 v3, v3, v4")
    e("v_lshlrev_b32 v4, 4, v2")
    for i in range(4):
        e(f"buffer_load_dwordx4 v[{12+4*i}:{15+4*i}], v3, {ws(SRD_A)}, s51 offen offset:{64*i} nt")
    for i in range(4):
        e(f"buffer_load_dwordx4 v[{28+4*i}:{31+4*i}], v4, {ws(SRD_B)}, s51 offen offset:{64*16*i} nt")
    e.label(f"L_kv_skip{tag}")


def phase1(e, st):
    XN, RED = L_XN, L_RED1
    e("s_cmp_ge_u32 s2, 208")
    e("s_cbranch_scc1 L_p1_skip")
    e("s_mov_b32 s48, 0")
    for lim in (52, 104, 156):
        e(f"s_cmp_ge_u32 s2, {lim}")
        e("s_addc_u32 s48, s48, 0")
    e("s_mul_i32 s49, s48, 52")
    e("s_sub_u32 s49, s2, s49")
    e("v_mul_u32_u24 v5, 18, v2")
    e("v_mul_u32_u24 v6, 36, v2")
    srd(e, SRD_M, 4, 1152)
    e(f"s_cmp_lg_u32 s{S_WAVE}, 0")
    e("s_cbranch_scc1 L_p1_a")
    for i in range(9):
        e(f"buffer_load_ushort v{8+i}, v5, {ws(SRD_M)}, 0 offen offset:{2*i}")
    e.label("L_p1_a")
    A = SRD_A
    e(f"s_mov_b32 s{A}, s10")
    e(f"s_mov_b32 s{A+1}, s11")
    e("s_mov_b32 s50, 8192")
    e("s_mov_b32 s52, 0")
    e("s_cmp_ge_u32 s49, 16")
    e(f"s_cselect_b32 s{A}, s16, s{A}")
    e(f"s_cselect_b32 s{A+1}, s17, s{A+1}")
    e("s_cselect_b32 s50, 9216, s50")
    e("s_cselect_b32 s52, 16, s52")
    e("s_cmp_ge_u32 s49, 34")
    e(f"s_cselect_b32 s{A}, s18, s{A}")
    e(f"s_cselect_b32 s{A+1}, s19, s{A+1}")
    e("s_cselect_b32 s52, 34, s52")
    e("s_sub_u32 s51, s49, s52")
    e(f"s_mul_i32 s{A+2}, s50, 576")
    e(f"s_mov_b32 s{A+3}, 0x20000")
    e("s_mul_i32 s54, s48, 144")
    e(f"s_lshl_b32 s55, s{S_WAVE}, 4")
    e("s_add_u32 s53, s54, s55")
    e("s_mul_i32 s54, s53, s50")
    e("s_lshl_b32 s55, s51, 9")
    e("s_add_u32 s54, s54, s55")
    for i in range(1, 8):
        e(f"s_add_u32 s{54+i}, s{54+i-1}, s50")
    e("s_lshl_b32 s62, s50, 3")
    e("v_and_b32 v3, 31, v2")
    e("v_lshlrev_b32 v3, 4, v3")
    e("v_lshrrev_b32 v4, 5, v2")
    e("v_mul_lo_u32 v4, v4, s62")
    e("v_add_u32 v3, v3, v4")
    e("s_barrier")
    for i in range(8):
        e(f"buffer_load_dwordx4 v[{32+4*i}:{35+4*i}], v3, {ws(A)}, s{54+i} offen nt")
    e("v_lshrrev_b32 v7, 5, v2")
    e("v_lshlrev_b32 v7, 5, v7")
    e("s_lshl_b32 s63, s53, 2")
    e("v_add_u32 v7, s63, v7")
    e("v_and_b32 v80, 31, v2")
    e("v_lshlrev_b32 v80, 5, v80")
    e("v_lshrrev_b32 v81, 5, v2")
    e("v_lshlrev_b32 v81, 4, v81")
    e("v_add_u32 v80, v80, v81")
    e(f"s_lshl_b32 s63, s{S_WAVE}, 10")
    e(f"s_add_u32 s63, s63, {RED}")
    e("v_add_u32 v80, s63, v80")
    e(f"s_cmp_lg_u32 s{S_WAVE}, 0")
    e("s_cbranch_scc1 L_p1_b")
    e("s_waitcnt vmcnt(8)")
    emit_ln(e, list(range(8, 17)), list(range(17, 24)) + [72], 63, S_MASK, 6, XN)
    srd(e, SRD_M, 24, 256)
    nonce_fetch_issue(e, 84)
    e("s_waitcnt lgkmcnt(0)")
    e.label("L_p1_b")
    st()
    e("s_barrier")
    e(f"ds_read_b128 v[24:27], v7 offset:{XN}")
    e(f"ds_read_b128 v[28:31], v7 offset:{XN+16}")
    e(f"s_cmp_lg_u32 s{S_WAVE}, 0")
    e("s_cbranch_scc1 L_p1_c")
    e("s_waitcnt vmcnt(0)")
    e.label("L_p1_c")
    for i in range(8):
        if i == 0:
            e("s_waitcnt lgkmcnt(0)")
        e(f"s_waitcnt vmcnt({7-i})")
        for j in range(4):
            d = 32 + 4 * i + j
            ta, tb = 72 + 2 * (j % 2), 73 + 2 * (j % 2)
            e(f"v_lshlrev_b32 v{ta}, 16, v{d}")
            e(f"v_and_b32 v{tb}, s{S_MASK}, v{d}")
            if i == 0:
                e(f"v_mul_f32 v{64+2*j}, v{24+i}, v{ta}")
                e(f"v_mul_f32 v{65+2*j}, v{24+i}, v{tb}")
            else:
                e(f"v_fmac_f32 v{64+2*j}, v{24+i}, v{ta}")
                e(f"v_fmac_f32 v{65+2*j}, v{24+i}, v{tb}")
    st()
    for j in range(4):
        e(f"v_permlane32_swap_b32 v{64+j}, v{68+j}")
    for j in range(4):
        e(f"v_add_f32 v{76+j}, v{64+j}, v{68+j}")
    e("ds_write_b128 v80, v[76:79]")
    e(f"s_cmp_lg_u32 s{S_WAVE}, 0")
    e("s_cbranch_scc1 L_p1_d")
    nonce_finish(e, 84, "a")
    e.label("L_p1_d")
    e("s_waitcnt lgkmcnt(0)")
    e("s_barrier")
    e(f"s_cmp_lg_u32 s{S_WAVE}, 0")
    e("s_cbranch_scc1 L_p1_e")
    e("v_lshlrev_b32 v1, 3, v2")
    for h in range(2):
        for s in range(9):
            e(f"ds_read_b64 v[{32+18*h+2*s}:{33+18*h+2*s}], v1 offset:{RED + 1024*s + 512*h}")
    e(f"s_mul_i32 s54, s48, {NG1}")
    e("s_lshl_b32 s55, s49, 7")
    e("s_add_u32 s54, s54, s55")
    e("s_lshl_b32 s54, s54, 4")
    if P1T:
        e(f"s_add_u32 s54, s54, {P1T}")
    e("v_lshlrev_b32 v1, 4, v2")
    set_tag(e, 76)
    set_tag(e, 80)
    for h in range(2):
        e(f"s_waitcnt lgkmcnt({9 - 9*h})")
        b = 32 + 18 * h
        e(f"v_pk_add_f32 v[{b}:{b+1}], v[{b}:{b+1}], v[{b+2}:{b+3}]")
        e(f"v_pk_add_f32 v[{b+4}:{b+5}], v[{b+4}:{b+5}], v[{b+6}:{b+7}]")
        e(f"v_pk_add_f32 v[{b+8}:{b+9}], v[{b+8}:{b+9}], v[{b+10}:{b+11}]")
        e(f"v_pk_add_f32 v[{b+12}:{b+13}], v[{b+12}:{b+13}], v[{b+14}:{b+15}]")
        e(f"v_pk_add_f32 v[{b}:{b+1}], v[{b}:{b+1}], v[{b+4}:{b+5}]")
        e(f"v_pk_add_f32 v[{b+8}:{b+9}], v[{b+8}:{b+9}], v[{b+12}:{b+13}]")
        e(f"v_pk_add_f32 v[{b}:{b+1}], v[{b}:{b+1}], v[{b+16}:{b+17}]")
        e(f"v_pk_add_f32 v[{76+4*h}:{77+4*h}], v[{b}:{b+1}], v[{b+8}:{b+9}]")
        e(f"buffer_store_dwordx4 v[{76+4*h}:{79+4*h}], v1, {ws()}, s54 offen offset:{1024*h} sc1")
    e("s_branch L_p1_e")
    e.label("L_p1_skip")
    e(f"s_cmp_lg_u32 s{S_WAVE}, 0")
    e("s_cbranch_scc1 L_p1_skip_b")
    srd(e, SRD_M, 24, 256)
    nonce_fetch_issue(e, 84)
    nonce_finish(e, 84, "b")
    e("s_waitcnt lgkmcnt(0)")
    e.label("L_p1_skip_b")
    e("s_barrier")
    e.label("L_p1_e")
    nonce_read(e, 84)
    st()


def od_issue(e):
    e("v_lshlrev_b32 v3, 4, v0")
    srd(e, SRD_A, 12, 4718592)
    e(f"s_mov_b32 s{SRD_B}, s20")
    e(f"s_mov_b32 s{SRD_B+1}, s21")
    e("s_mul_i32 s56, s2, 20736")
    e(f"s_add_u32 s{SRD_B+2}, s56, 20736")
    e(f"s_mov_b32 s{SRD_B+3}, 0x20000")
    e("s_mul_i32 s57, s2, 18432")
    e("s_add_u32 s58, s57, 9216")
    e("s_add_u32 s59, s56, 9216")
    e("s_add_u32 s60, s56, 18432")
    for n, (srd_, so) in enumerate(((SRD_A, 57), (SRD_A, 58), (SRD_B, 56), (SRD_B, 59), (SRD_B, 60))):
        e(f"buffer_load_dwordx4 v[{96+4*n}:{99+4*n}], v3, {ws(srd_)}, s{so} offen nt")


def phase2(e, st):
    QL, OACC, ML = L_QL, L_OACC, L_ML
    kv_issue(e)
    e("s_lshr_b32 s48, s2, 4")
    e("s_and_b32 s49, s2, 15")
    e(f"s_cmp_eq_u32 s{S_WAVE}, 0")
    e("s_cbranch_scc1 L_p2_helper")
    e(f"s_sub_u32 s50, s{S_WAVE}, 1")
    e("v_lshrrev_b32 v5, 4, v2")
    e("v_and_b32 v70, 7, v2")
    e("v_and_b32 v71, 1, v70")
    e("v_lshlrev_b32 v71, 4, v71")
    e("v_mov_b32 v72, 0xffff")
    e("v_lshlrev_b32 v72, v71, v72")
    e("v_lshrrev_b32 v70, 1, v70")
    for k in range(4):
        e(f"v_cmp_eq_u32 vcc, {k}, v70")
        e(f"v_cndmask_b32 v{8+k}, 0, v72, vcc")
    e("v_bfe_u32 v6, v2, 3, 1")
    e("v_lshlrev_b32 v6, 6, v6")
    e("v_lshlrev_b32 v70, 2, v5")
    e("v_add_u32 v6, v6, v70")
    e("v_bfe_u32 v73, v2, 2, 1")
    e("v_lshlrev_b32 v73, 8, v73")
    e("v_lshlrev_b32 v70, 4, v5")
    e("v_add_u32 v73, v73, v70")
    e("v_lshrrev_b32 v7, 5, v2")
    e("v_lshlrev_b32 v7, 9, v7")
    e("v_and_b32 v70, 15, v2")
    e("v_lshlrev_b32 v70, 5, v70")
    e("v_add_u32 v7, v7, v70")
    e("v_bfe_u32 v70, v2, 4, 1")
    e("v_lshlrev_b32 v71, 4, v70")
    e("v_add_u32 v7, v7, v71")
    e("s_lshl_b32 s52, s50, 10")
    e(f"s_add_u32 s52, s52, {OACC}")
    e("v_add_u32 v7, s52, v7")
    e("v_lshlrev_b32 v69, 3, v70")
    e("s_lshl_b32 s52, s50, 4")
    e(f"s_add_u32 s52, s52, {ML}")
    e("v_add_u32 v69, s52, v69")
    e("s_barrier")
    st()
    for i in range(4):
        e(f"ds_read_b128 v[{44+4*i}:{47+4*i}], v73 offset:{QL + 64*i}")
    od_issue(e)
    e("s_waitcnt vmcnt(9) lgkmcnt(0)")
    st()
    for i in range(4):
        c = "0" if i == 0 else "v[60:63]"
        e(f"v_mfma_f32_16x16x32_bf16 v[60:63], v[{44+4*i}:{47+4*i}], v[{12+4*i}:{15+4*i}], {c}")
    e("v_cvt_pk_bf16_f32 v70, v60, v60")
    e("v_lshlrev_b32 v70, 16, v70")
    e(f"v_mul_f32 v70, s{S_SCALE}, v70")
    rb(e, 70, 71)
    e("v_mov_b32 v74, v70")
    row_allreduce(e, "v_max_f32", 74)
    e("v_sub_f32 v70, v70, v74")
    e(f"v_mul_f32 v70, s{S_LOG2E}, v70")
    e("v_exp_f32 v70, v70")
    e("v_mov_b32 v75, v70")
    row_allreduce(e, "v_add_f32", 75)
    e("v_cvt_pk_bf16_f32 v71, v70, v70")
    e("ds_write_b64 v69, v[74:75]")
    for i in range(4):
        e(f"ds_bpermute_b32 v{76+i}, v6, v71 offset:{16*i}")
    for i in range(4):
        e(f"s_waitcnt vmcnt({8-i}) lgkmcnt({3-i})")
        for k in range(4):
            e(f"v_and_b32 v{80+4*(i%2)+k}, v{8+k}, v{76+i}")
        c = "0" if i == 0 else "v[64:67]"
        a = 80 + 4 * (i % 2)
        e(f"v_mfma_f32_16x16x32_bf16 v[64:67], v[{a}:{a+3}], v[{28+4*i}:{31+4*i}], {c}")
    e("ds_write_b128 v7, v[64:67]")
    e("s_waitcnt lgkmcnt(0)")
    st()
    e("s_barrier")
    e("s_branch L_p2_comb")
    e.label("L_p2_helper")
    e("v_lshlrev_b32 v3, 4, v2")
    e("s_lshl_b32 s50, s48, 11")
    if P1T:
        e(f"s_add_u32 s50, s50, {P1T}")
    e("s_mov_b32 s51, 0")
    e.label("L_p2_retry")
    for ks in range(4):
        e(f"s_add_u32 s{52+ks}, s50, {ks * NG1 * 16}")
        e(f"buffer_load_dwordx4 v[{12+8*ks}:{15+8*ks}], v3, {ws()}, s{52+ks} offen sc1")
        e(f"buffer_load_dwordx4 v[{16+8*ks}:{19+8*ks}], v3, {ws()}, s{52+ks} offen offset:1024 sc1")
    tagchk_init(e, 44)
    for n in range(8):
        e(f"s_waitcnt vmcnt({7-n})")
        tagchk(e, 44, 12 + 4 * n, 45, 46)
    spin_tail(e, 44, 51, "L_p2_retry", "L_p2_ok")
    e.label("L_p2_ok")
    for h in range(2):
        b = 12 + 4 * h
        e(f"v_pk_add_f32 v[{b}:{b+1}], v[{b}:{b+1}], v[{b+8}:{b+9}]")
        e(f"v_pk_add_f32 v[{b+16}:{b+17}], v[{b+16}:{b+17}], v[{b+24}:{b+25}]")
        e(f"v_pk_add_f32 v[{b}:{b+1}], v[{b}:{b+1}], v[{b+16}:{b+17}]")
        e(f"v_cvt_pk_bf16_f32 v{48+h}, v{b}, v{b+1}")
    e("v_lshlrev_b32 v4, 2, v2")
    e(f"ds_write_b32 v4, v48 offset:{QL}")
    e(f"ds_write_b32 v4, v49 offset:{QL+256}")
    e("s_waitcnt lgkmcnt(0)")
    e("s_barrier")
    od_issue(e)
    e("s_barrier")
    e.label("L_p2_comb")
    e(f"s_cmp_ge_u32 s{S_WAVE}, 2")
    e("s_cbranch_scc1 L_p2_end")
    e(f"s_lshl_b32 s50, s{S_WAVE}, 3")
    e(f"s_add_u32 s50, s50, {ML}")
    e("v_mov_b32 v3, s50")
    e("v_lshlrev_b32 v4, 3, v2")
    e(f"s_lshl_b32 s50, s{S_WAVE}, 9")
    e("v_add_u32 v4, s50, v4")
    for w in range(8):
        e(f"ds_read_b64 v[{12+2*w}:{13+2*w}], v3 offset:{16*w}")
    for w in range(8):
        e(f"ds_read_b64 v[{28+2*w}:{29+2*w}], v4 offset:{OACC + 1024*w}")
    e("s_lshl_b32 s51, s48, 1")
    e(f"s_add_u32 s51, s51, s{S_WAVE}")
    e("s_lshl_b32 s51, s51, 4")
    e("s_add_u32 s51, s51, s49")
    e("s_lshl_b32 s52, s51, 10")
    e(f"s_add_u32 s52, s52, {PACC}")
    e("s_lshl_b32 s53, s51, 7")
    e(f"s_add_u32 s53, s53, {PML}")
    e("s_waitcnt lgkmcnt(8)")
    e("v_max3_f32 v48, v12, v14, v16")
    e("v_max3_f32 v48, v48, v18, v20")
    e("v_max3_f32 v48, v48, v22, v24")
    e("v_max_f32 v48, v48, v26")
    for w in range(8):
        e(f"v_sub_f32 v{52+w}, v{12+2*w}, v48")
    for w in range(8):
        e(f"v_mul_f32 v{52+w}, s{S_LOG2E}, v{52+w}")
    for w in range(8):
        e(f"v_exp_f32 v{52+w}, v{52+w}")
    e("v_mul_f32 v49, v52, v13")
    for w in range(1, 8):
        e(f"v_fmac_f32 v49, v{52+w}, v{13+2*w}")
    set_tag(e, 48)
    e("s_waitcnt lgkmcnt(0)")
    e("v_mul_f32 v60, v52, v28")
    e("v_mul_f32 v61, v52, v29")
    for w in range(1, 8):
        e(f"v_fmac_f32 v60, v{52+w}, v{28+2*w}")
        e(f"v_fmac_f32 v61, v{52+w}, v{29+2*w}")
    set_tag(e, 60)
    e("v_lshlrev_b32 v6, 4, v2")
    e(f"buffer_store_dwordx4 v[60:63], v6, {ws()}, s52 offen sc1")
    e("s_mov_b64 s[54:55], exec")
    e("s_mov_b64 exec, 1")
    e(f"buffer_store_dwordx4 v[48:51], v6, {ws()}, s53 offen sc1")
    e("s_mov_b64 exec, s[54:55]")
    e.label("L_p2_end")
    st()


def phase3(e, st):
    e("v_mul_u32_u24 v4, 911, v0")
    e("v_lshrrev_b32 v4, 16, v4")
    e("v_mul_u32_u24 v5, 72, v4")
    e("v_sub_u32 v5, v0, v5")
    e(f"s_cmp_lg_u32 s{S_WAVE}, 0")
    e("s_cbranch_scc1 L_p3_a")
    e("s_lshr_b32 s53, s2, 3")
    e("s_and_b32 s54, s2, 7")
    e("v_and_b32 v6, 15, v2")
    e("v_lshrrev_b32 v7, 4, v2")
    e("v_lshlrev_b32 v8, 10, v6")
    e("v_lshl_add_u32 v8, v7, 4, v8")
    e("s_lshl_b32 s55, s53, 14")
    e("s_lshl_b32 s56, s54, 7")
    e("s_add_u32 s55, s55, s56")
    e(f"s_add_u32 s55, s55, {PACC}")
    e("v_lshlrev_b32 v9, 7, v6")
    e("s_lshl_b32 s56, s53, 11")
    e(f"s_add_u32 s56, s56, {PML}")
    e("v_min_u32 v10, 8, v2")
    e("v_lshlrev_b32 v11, 4, v10")
    e("s_mul_i32 s57, s2, 144")
    e("s_mov_b32 s58, 0")
    e.label("L_p3_retry")
    e(f"buffer_load_dwordx4 v[12:15], v9, {ws()}, s56 offen sc1")
    e(f"buffer_load_dwordx4 v[16:19], v8, {ws()}, s55 offen sc1")
    e(f"buffer_load_dwordx4 v[20:23], v8, {ws()}, s55 offen offset:64 sc1")
    for ks in range(4):
        e(f"s_add_u32 s59, s57, {P1T + (ks*NG1 + 2048)*16}")
        e(f"buffer_load_dwordx4 v[{32+8*ks}:{35+8*ks}], v11, {ws()}, s59 offen sc1")
        e(f"s_add_u32 s60, s57, {P1T + (ks*NG1 + 4352)*16}")
        e(f"buffer_load_dwordx4 v[{36+8*ks}:{39+8*ks}], v11, {ws()}, s60 offen sc1")
    tagchk_init(e, 24)
    quads = [12, 16, 20] + [32 + 4 * i for i in range(8)]
    for n, q in enumerate(quads):
        e(f"s_waitcnt vmcnt({10-n})")
        tagchk(e, 24, q, 25, 26)
    spin_tail(e, 24, 58, "L_p3_retry", "L_p3_ok")
    e.label("L_p3_ok")
    st()
    e("v_mov_b32 v14, v12")
    row_allreduce(e, "v_max_f32", 14)
    e("v_sub_f32 v12, v12, v14")
    e(f"v_mul_f32 v12, s{S_LOG2E}, v12")
    e("v_exp_f32 v12, v12")
    e("v_mul_f32 v13, v12, v13")
    row_allreduce(e, "v_add_f32", 13)
    e("v_rcp_f32 v14, v13")
    e("v_fma_f32 v15, -v13, v14, 1.0")
    e("v_fma_f32 v14, v15, v14, v14")
    e("v_mul_f32 v12, v12, v14")
    vals = [16, 17, 20, 21]
    for r in vals:
        e(f"v_mul_f32 v{r}, v12, v{r}")
    for sh in (8, 4, 2, 1):
        for r in vals:
            e(f"v_add_f32_dpp v{r}, v{r}, v{r} row_ror:{sh} row_mask:0xf bank_mask:0xf")
    rb2(e, 16, 17, 24, S_MASK)
    rb2(e, 20, 21, 24, S_MASK)
    e("v_lshlrev_b32 v7, 4, v7")
    e(f"ds_write_b32 v7, v16 offset:{L_XO}")
    e(f"ds_write_b32 v7, v17 offset:{L_XO+8}")
    e(f"ds_write_b32 v7, v20 offset:{L_XO+4}")
    e(f"ds_write_b32 v7, v21 offset:{L_XO+12}")
    e("v_pk_add_f32 v[32:33], v[32:33], v[40:41]")
    e("v_pk_add_f32 v[48:49], v[48:49], v[56:57]")
    e("v_pk_add_f32 v[32:33], v[32:33], v[48:49]")
    e("v_pk_add_f32 v[36:37], v[36:37], v[44:45]")
    e("v_pk_add_f32 v[52:53], v[52:53], v[60:61]")
    e("v_pk_add_f32 v[36:37], v[36:37], v[52:53]")
    rb2(e, 32, 33, 24, S_MASK)
    rb2(e, 36, 37, 24, S_MASK)
    e("s_mov_b32 s59, 0xc2fc0000")
    for r in (32, 33):
        e(f"v_mul_f32 v24, s{S_LOG2E}, v{r}")
        e("v_max_f32 v24, s59, v24")
        e("v_exp_f32 v24, -v24")
        e("v_add_f32 v24, 1.0, v24")
        e("v_rcp_f32 v25, v24")
        e("v_fma_f32 v26, -v24, v25, 1.0")
        e("v_fma_f32 v25, v26, v25, v25")
        e(f"v_mul_f32 v{r}, v{r}, v25")
    rb2(e, 32, 33, 24, S_MASK)
    e("v_mul_f32 v32, v32, v36")
    e("v_mul_f32 v33, v33, v37")
    rb2(e, 32, 33, 24, S_MASK)
    e("v_lshlrev_b32 v24, 1, v10")
    e("v_and_b32 v25, 7, v24")
    e("v_lshlrev_b32 v25, 4, v25")
    e("v_lshrrev_b32 v26, 3, v24")
    e("v_lshl_add_u32 v25, v26, 2, v25")
    e(f"ds_write_b32 v25, v32 offset:{L_XD}")
    e(f"ds_write_b32 v25, v33 offset:{L_XD+16}")
    e("v_subrev_u32 v24, 16, v2")
    e("v_lshlrev_b32 v24, 4, v24")
    e("v_mov_b32 v25, 0")
    e("v_cmp_gt_u32 vcc, 8, v24")
    e("v_subrev_u32 v26, 18, v2")
    e("v_cmp_gt_u32 vcc, 6, v26")
    e("s_and_saveexec_b64 s[60:61], vcc")
    e(f"ds_write_b32 v24, v25 offset:{L_XD+8}")
    e("s_mov_b64 exec, s[60:61]")
    e("s_waitcnt lgkmcnt(0)")
    e.label("L_p3_a")
    e("s_barrier")
    st()
    e("v_lshlrev_b32 v6, 3, v4")
    e(f"ds_read_b64 v[24:25], v6 offset:{L_XO}")
    e("v_lshlrev_b32 v6, 4, v4")
    e(f"ds_read_b96 v[28:30], v6 offset:{L_XD}")
    e("v_mul_u32_u24 v8, 2304, v4")
    e("v_lshl_add_u32 v8, v5, 5, v8")
    plan = [(24, 52, True), (25, 52, False), (28, 60, True), (29, 60, False), (30, 60, False)]
    for n, (xv, acc, first) in enumerate(plan):
        if n == 0:
            e("s_waitcnt vmcnt(0) lgkmcnt(0)")
        for j in range(4):
            d = 96 + 4 * n + j
            ta, tb = 68 + 2 * (j % 2), 69 + 2 * (j % 2)
            e(f"v_lshlrev_b32 v{ta}, 16, v{d}")
            e(f"v_and_b32 v{tb}, s{S_MASK}, v{d}")
            if first:
                e(f"v_mul_f32 v{acc+2*j}, v{xv}, v{ta}")
                e(f"v_mul_f32 v{acc+2*j+1}, v{xv}, v{tb}")
            else:
                e(f"v_fmac_f32 v{acc+2*j}, v{xv}, v{ta}")
                e(f"v_fmac_f32 v{acc+2*j+1}, v{xv}, v{tb}")
    e(f"ds_write_b128 v8, v[52:55] offset:{L_REDS}")
    e(f"ds_write_b128 v8, v[56:59] offset:{L_REDS+16}")
    e(f"ds_write_b128 v8, v[60:63] offset:{L_REDF}")
    e(f"ds_write_b128 v8, v[64:67] offset:{L_REDF+16}")
    e("s_waitcnt lgkmcnt(0)")
    st()
    e("s_barrier")
    e("v_cmp_le_u32 vcc, 288, v0")
    e("v_mov_b32 v6, 0")
    e("v_mov_b32 v7, 288")
    e("v_cndmask_b32 v7, 0, v7, vcc")
    e("v_sub_u32 v6, v0, v7")
    e(f"v_mov_b32 v9, {L_REDF - L_REDS}")
    e("v_cndmask_b32 v9, 0, v9, vcc")
    e("v_lshl_add_u32 v9, v6, 3, v9")
    for r in range(8):
        e(f"ds_read_b64 v[{32+2*r}:{33+2*r}], v9 offset:{L_REDS + 2304*r}")
    e(f"v_mov_b32 v10, {PARTF - PARTS}")
    e("v_cndmask_b32 v10, 0, v10, vcc")
    e("v_lshl_add_u32 v10, v6, 4, v10")
    e("s_mul_i32 s48, s2, 4608")
    e(f"s_add_u32 s48, s48, {PARTS}")
    e("s_waitcnt lgkmcnt(4)")
    e("v_pk_add_f32 v[32:33], v[32:33], v[34:35]")
    e("v_pk_add_f32 v[36:37], v[36:37], v[38:39]")
    e("v_pk_add_f32 v[32:33], v[32:33], v[36:37]")
    e("s_waitcnt lgkmcnt(0)")
    e("v_pk_add_f32 v[40:41], v[40:41], v[42:43]")
    e("v_pk_add_f32 v[44:45], v[44:45], v[46:47]")
    e("v_pk_add_f32 v[40:41], v[40:41], v[44:45]")
    e("v_pk_add_f32 v[48:49], v[32:33], v[40:41]")
    set_tag(e, 48)
    e(f"buffer_store_dwordx4 v[48:51], v10, {ws()}, s48 offen sc1")
    st()


def phase4(e, st):
    e("s_cmp_ge_u32 s2, 144")
    e("s_cbranch_scc1 L_end")
    e(f"s_cmp_lg_u32 s{S_WAVE}, 0")
    e("s_cbranch_scc1 L_end")
    srd(e, SRD_A, 4, 1152)
    srd(e, SRD_B, 22, 1152)
    e("v_and_b32 v3, 1, v2")
    e("v_lshlrev_b32 v4, 2, v3")
    e("s_lshl_b32 s48, s2, 3")
    e(f"buffer_load_dword v80, v4, {ws(SRD_A)}, s48 offen")
    e("v_lshrrev_b32 v5, 1, v2")
    e("v_mul_u32_u24 v5, 4608, v5")
    e("v_lshl_add_u32 v5, v3, 4, v5")
    e("s_lshl_b32 s49, s2, 5")
    e("s_mov_b32 s50, 0")
    for i in range(8):
        e(f"s_add_u32 s{52+i}, s49, {PARTS + i*32*4608}")
        e(f"s_add_u32 s{60+i}, s49, {PARTF + i*32*4608}")
    e.label("L_p4_retry")
    for i in range(8):
        e(f"buffer_load_dwordx4 v[{8+4*i}:{11+4*i}], v5, {ws()}, s{52+i} offen sc1")
    for i in range(8):
        e(f"buffer_load_dwordx4 v[{40+4*i}:{43+4*i}], v5, {ws()}, s{60+i} offen sc1")
    tagchk_init(e, 72)
    for n in range(16):
        e(f"s_waitcnt vmcnt({15-n})")
        tagchk(e, 72, 8 + 4 * n, 73, 74)
    spin_tail(e, 72, 50, "L_p4_retry", "L_p4_ok")
    e.label("L_p4_ok")
    for b in (8, 40):
        e(f"v_pk_add_f32 v[{b}:{b+1}], v[{b}:{b+1}], v[{b+4}:{b+5}]")
        e(f"v_pk_add_f32 v[{b+8}:{b+9}], v[{b+8}:{b+9}], v[{b+12}:{b+13}]")
        e(f"v_pk_add_f32 v[{b+16}:{b+17}], v[{b+16}:{b+17}], v[{b+20}:{b+21}]")
        e(f"v_pk_add_f32 v[{b+24}:{b+25}], v[{b+24}:{b+25}], v[{b+28}:{b+29}]")
        e(f"v_pk_add_f32 v[{b}:{b+1}], v[{b}:{b+1}], v[{b+8}:{b+9}]")
        e(f"v_pk_add_f32 v[{b+16}:{b+17}], v[{b+16}:{b+17}], v[{b+24}:{b+25}]")
        e(f"v_pk_add_f32 v[{b}:{b+1}], v[{b}:{b+1}], v[{b+16}:{b+17}]")
    vals = [8, 9, 40, 41]
    for sh in (8, 4, 2):
        for r in vals:
            e(f"v_add_f32_dpp v{r}, v{r}, v{r} row_ror:{sh} row_mask:0xf bank_mask:0xf")
    for swap in ("v_permlane16_swap_b32", "v_permlane32_swap_b32"):
        for k, r in enumerate(vals):
            e(f"v_mov_b32 v{12+k}, v{r}")
        for k, r in enumerate(vals):
            e(f"{swap} v{r}, v{12+k}")
        for k, r in enumerate(vals):
            e(f"v_add_f32 v{r}, v{r}, v{12+k}")
    rb2(e, 8, 9, 12, S_MASK)
    rb2(e, 40, 41, 12, S_MASK)
    e("s_mov_b32 s51, 0xc2fc0000")
    for r in (40, 41):
        e(f"v_mul_f32 v12, s{S_LOG2E}, v{r}")
        e("v_max_f32 v12, s51, v12")
        e("v_exp_f32 v12, -v12")
        e("v_add_f32 v12, 1.0, v12")
        e("v_rcp_f32 v13, v12")
        e("v_fma_f32 v14, -v12, v13, 1.0")
        e("v_fma_f32 v13, v14, v13, v13")
        e(f"v_mul_f32 v{r}, v{r}, v13")
    rb2(e, 40, 41, 12, S_MASK)
    e("v_mul_f32 v8, v8, v40")
    e("v_mul_f32 v9, v9, v41")
    rb2(e, 8, 9, 12, S_MASK)
    e("v_lshlrev_b32 v12, 16, v80")
    e(f"v_and_b32 v13, s{S_MASK}, v80")
    e("v_add_f32 v8, v12, v8")
    e("v_add_f32 v9, v13, v9")
    e("v_cvt_pk_bf16_f32 v8, v8, v9")
    e("s_mov_b64 exec, 3")
    e(f"buffer_store_dword v8, v4, {ws(SRD_B)}, s48 offen")
    e("s_mov_b64 exec, -1")


def build(stamps=False, prefetch=True):
    e = Emitter()
    st = St(e, stamps)
    e(kernel_head(NAME))
    e.label(NAME)
    e(f"s_cmp_ge_u32 s2, {NWG}")
    e("s_cbranch_scc1 L_exit")
    st()
    prologue(e, st, prefetch)
    phase1(e, st)
    dbg_time(e, 0)
    phase2(e, st)
    dbg_time(e, 1)
    phase3(e, st)
    dbg_time(e, 2)
    phase4(e, st)
    dbg_time(e, 3)
    e.label("L_end")
    st.flush(120, 48)
    e.label("L_exit")
    e("s_endpgm")
    e.label("L_code_end")
    e(kernel_desc(NAME, 128, 102))
    out = HEADER + f"; @launch grid=({NWG},1,1) block=(576,1,1) lds={LDS_BYTES}\n" + '.amdgcn_target "amdgcn-amd-amdhsa--gfx950"\n' + e.text()
    return out, st.n


if __name__ == "__main__":
    stamps = "--stamps" in sys.argv
    path = [a for a in sys.argv[1:] if not a.startswith("--")][0]
    txt, n = build(stamps, "--noprefetch" not in sys.argv)
    open(path, "w").write(txt)
    print("stamps:", n)
```

```python
import sys
from asmgen import Emitter
from common import *

NAME = "recurrent_scan__sliding_block_cached__swiglu_ffn__decode_kernel"
NWG = 256
P1T = 0x000000
PACC = 0x080000
PML = 0x100000
PARTS = 0x200000
PARTF = 0x400000
STAMP_OFF = 0x800000
WS_BYTES = 268435456
NG1 = 6656

L_XN = 0
L_RED1 = 2304
L_QL = 12288
L_OACC = 12800
L_ML = 20992
L_NONCE = 21248
L_XO = 21504
L_XD = 21632
L_REDS = 22528
L_REDF = 40960
LDS_BYTES = 59392

S_WAVE, S_MASK, S_NLO, S_NHI = 28, 29, 30, 31
SRD_A, SRD_B, SRD_WS, SRD_M = 32, 36, 40, 44
S_SCALE, S_LOG2E = 70, 71
NSTAMP = 14
S_ST = 72
SPIN_LIMIT = 400000


class St:
    def __init__(self, e, on):
        self.e, self.on, self.n = e, on, 0

    def __call__(self):
        if not self.on:
            return
        i = self.n
        self.n += 1
        assert i < NSTAMP
        self.e(f"s_memrealtime s[{S_ST+2*i}:{S_ST+2*i+1}]")

    def flush(self, vt, s_tmp):
        if not self.on:
            return
        e = self.e
        self()
        e("s_waitcnt lgkmcnt(0) vmcnt(0)")
        e("s_mov_b64 exec, 1")
        e(f"s_lshl_b32 s{s_tmp}, s2, 4")
        e(f"s_add_u32 s{s_tmp}, s{s_tmp}, s{S_WAVE}")
        e(f"s_lshl_b32 s{s_tmp}, s{s_tmp}, 7")
        e(f"s_add_u32 s{s_tmp}, s{s_tmp}, {STAMP_OFF}")
        e(f"v_mov_b32 v{vt+4}, 0")
        n = self.n + (self.n & 1)
        for i in range(0, n, 2):
            e(f"v_mov_b32 v{vt}, s{S_ST+2*i}")
            e(f"v_mov_b32 v{vt+1}, s{S_ST+2*i+1}")
            e(f"v_mov_b32 v{vt+2}, s{S_ST+2*i+2}")
            e(f"v_mov_b32 v{vt+3}, s{S_ST+2*i+3}")
            e(f"buffer_store_dwordx4 v[{vt}:{vt+3}], v{vt+4}, s[{SRD_WS}:{SRD_WS+3}], s{s_tmp} offen offset:{8*i}")
            e("s_nop 1")


def ws(r=SRD_WS):
    return f"s[{r}:{r+3}]"


def tagchk_init(e, vbad):
    e(f"v_mov_b32 v{vbad}, 0")


def tagchk(e, vbad, q, t0, t1):
    e(f"v_xor_b32 v{t0}, s{S_NLO}, v{q+2}")
    e(f"v_xor_b32 v{t1}, s{S_NHI}, v{q+3}")
    e(f"v_or3_b32 v{vbad}, v{vbad}, v{t0}, v{t1}")


def spin_tail(e, vbad, s_cnt, lbl_retry, lbl_ok):
    e(f"v_cmp_ne_u32 vcc, 0, v{vbad}")
    e("s_cmp_eq_u64 vcc, 0")
    e(f"s_cbranch_scc1 {lbl_ok}")
    e(f"s_add_u32 s{s_cnt}, s{s_cnt}, 1")
    e("s_sleep 1")
    e(f"s_cmp_lt_u32 s{s_cnt}, {SPIN_LIMIT}")
    e(f"s_cbranch_scc1 {lbl_retry}")


def set_tag(e, q):
    e(f"v_mov_b32 v{q+2}, s{S_NLO}")
    e(f"v_mov_b32 v{q+3}, s{S_NHI}")


def prologue(e, st, prefetch):
    e("s_getpc_b64 s[48:49]")
    e.label("L_pfbase")
    e(f"s_load_dwordx8 s[4:11], s[0:1], {KA_X}")
    e(f"s_load_dwordx2 s[12:13], s[0:1], {KA_WO}")
    e(f"s_load_dwordx8 s[16:23], s[0:1], {KA_WG}")
    e(f"s_load_dwordx4 s[24:27], s[0:1], {KA_DBG}")
    e("v_lshrrev_b32 v1, 6, v0")
    e("v_and_b32 v2, 63, v0")
    e(f"v_readfirstlane_b32 s{S_WAVE}, v1")
    if prefetch:
        e("v_lshlrev_b32 v3, 4, v0")
        e("s_mov_b32 s50, L_code_end-L_pfbase")
        e("s_mov_b32 s51, 0x20000")
        e("buffer_load_dwordx4 v[116:119], v3, s[48:51], 0 offen")
    e(f"s_mov_b32 s{S_MASK}, 0xffff0000")
    e(f"s_mov_b32 s{S_SCALE}, {C_SCALE}")
    e(f"s_mov_b32 s{S_LOG2E}, {C_LOG2E}")
    e("s_waitcnt lgkmcnt(0)")
    st()
    srd(e, SRD_WS, 26, WS_BYTES)
    srd(e, SRD_B, 24, 256)
    e("s_or_b32 s50, s2, s28")
    e("s_cmp_lg_u32 s50, 0")
    e("s_cbranch_scc1 L_nopub")
    e(f"s_memrealtime s[{S_NLO}:{S_NHI}]")
    e("s_waitcnt lgkmcnt(0)")
    e(f"s_or_b32 s{S_NLO}, s{S_NLO}, 1")
    e(f"v_mov_b32 v8, s{S_NLO}")
    e(f"v_mov_b32 v9, s{S_NHI}")
    e("v_mov_b32 v10, 0")
    e("s_mov_b64 exec, 1")
    e(f"buffer_store_dwordx2 v[8:9], v10, s[{SRD_B}:{SRD_B+3}], 0 offen sc1")
    e("s_mov_b64 exec, -1")
    e.label("L_nopub")


def nonce_fetch_issue(e, vq):
    e(f"v_mov_b32 v{vq+2}, 0")
    e(f"buffer_load_dwordx2 v[{vq}:{vq+1}], v{vq+2}, s[{SRD_M}:{SRD_M+3}], 0 offen sc1")


def nonce_finish(e, vq, tag):
    e("s_mov_b32 s50, 0")
    e(f"v_mov_b32 v{vq+2}, 0")
    e.label(f"L_nonce_chk{tag}")
    e("s_waitcnt vmcnt(0)")
    e(f"v_readfirstlane_b32 s{S_NLO}, v{vq}")
    e(f"v_readfirstlane_b32 s{S_NHI}, v{vq+1}")
    e(f"s_cmp_lg_u32 s{S_NLO}, 0")
    e(f"s_cbranch_scc1 L_nonce_ok{tag}")
    e("s_add_u32 s50, s50, 1")
    e("s_sleep 1")
    e(f"s_cmp_ge_u32 s50, {SPIN_LIMIT}")
    e(f"s_cbranch_scc1 L_nonce_ok{tag}")
    e(f"buffer_load_dwordx2 v[{vq}:{vq+1}], v{vq+2}, s[{SRD_M}:{SRD_M+3}], 0 offen sc1")
    e(f"s_branch L_nonce_chk{tag}")
    e.label(f"L_nonce_ok{tag}")
    e(f"ds_write_b64 v{vq+2}, v[{vq}:{vq+1}] offset:{L_NONCE}")


def nonce_read(e, vq):
    e(f"v_mov_b32 v{vq+2}, 0")
    e(f"ds_read_b64 v[{vq}:{vq+1}], v{vq+2} offset:{L_NONCE}")
    e("s_waitcnt lgkmcnt(0)")
    e(f"v_readfirstlane_b32 s{S_NLO}, v{vq}")
    e(f"v_readfirstlane_b32 s{S_NHI}, v{vq+1}")


def kv_issue(e, tag="a", which="kv"):
    e(f"s_cmp_eq_u32 s{S_WAVE}, 0")
    e(f"s_cbranch_scc1 L_kv_skip{tag}")
    e("s_lshr_b32 s48, s2, 4")
    e("s_and_b32 s49, s2, 15")
    srd(e, SRD_A, 6, 33554432)
    srd(e, SRD_B, 8, 33554432)
    e(f"s_sub_u32 s50, s{S_WAVE}, 1")
    e("s_lshl_b32 s51, s48, 21")
    e("s_lshl_b32 s52, s49, 15")
    e("s_lshl_b32 s53, s50, 12")
    e("s_add_u32 s51, s51, s52")
    e("s_add_u32 s51, s51, s53")
    e("s_add_u32 s51, s51, 0x180000")
    e("v_and_b32 v3, 15, v2")
    e("v_lshlrev_b32 v3, 8, v3")
    e("v_lshrrev_b32 v5, 4, v2")
    e("v_lshlrev_b32 v4, 4, v5")
    e("v_add_u32 v3, v3, v4")
    e("v_lshlrev_b32 v4, 4, v2")
    if "k" in which:
        for i in range(4):
            e(f"buffer_load_dwordx4 v[{12+4*i}:{15+4*i}], v3, {ws(SRD_A)}, s51 offen offset:{64*i} nt")
    if "v" in which:
        for i in range(4):
            e(f"buffer_load_dwordx4 v[{28+4*i}:{31+4*i}], v4, {ws(SRD_B)}, s51 offen offset:{64*16*i} nt")
    e.label(f"L_kv_skip{tag}")


def phase1(e, st):
    XN, RED = L_XN, L_RED1
    e("s_cmp_ge_u32 s2, 208")
    e("s_cbranch_scc1 L_p1_skip")
    e("s_mov_b32 s48, 0")
    for lim in (52, 104, 156):
        e(f"s_cmp_ge_u32 s2, {lim}")
        e("s_addc_u32 s48, s48, 0")
    e("s_mul_i32 s49, s48, 52")
    e("s_sub_u32 s49, s2, s49")
    e("v_mul_u32_u24 v5, 18, v2")
    e("v_mul_u32_u24 v6, 36, v2")
    srd(e, SRD_M, 4, 1152)
    e(f"s_cmp_lg_u32 s{S_WAVE}, 0")
    e("s_cbranch_scc1 L_p1_a")
    for i in range(9):
        e(f"buffer_load_ushort v{8+i}, v5, {ws(SRD_M)}, 0 offen offset:{2*i}")
    e.label("L_p1_a")
    A = SRD_A
    e(f"s_mov_b32 s{A}, s10")
    e(f"s_mov_b32 s{A+1}, s11")
    e("s_mov_b32 s50, 8192")
    e("s_mov_b32 s52, 0")
    e("s_cmp_ge_u32 s49, 16")
    e(f"s_cselect_b32 s{A}, s16, s{A}")
    e(f"s_cselect_b32 s{A+1}, s17, s{A+1}")
    e("s_cselect_b32 s50, 9216, s50")
    e("s_cselect_b32 s52, 16, s52")
    e("s_cmp_ge_u32 s49, 34")
    e(f"s_cselect_b32 s{A}, s18, s{A}")
    e(f"s_cselect_b32 s{A+1}, s19, s{A+1}")
    e("s_cselect_b32 s52, 34, s52")
    e("s_sub_u32 s51, s49, s52")
    e(f"s_mul_i32 s{A+2}, s50, 576")
    e(f"s_mov_b32 s{A+3}, 0x20000")
    e("s_mul_i32 s54, s48, 144")
    e(f"s_lshl_b32 s55, s{S_WAVE}, 4")
    e("s_add_u32 s53, s54, s55")
    e("s_mul_i32 s54, s53, s50")
    e("s_lshl_b32 s55, s51, 9")
    e("s_add_u32 s54, s54, s55")
    for i in range(1, 8):
        e(f"s_add_u32 s{54+i}, s{54+i-1}, s50")
    e("s_lshl_b32 s62, s50, 3")
    e("v_and_b32 v3, 31, v2")
    e("v_lshlrev_b32 v3, 4, v3")
    e("v_lshrrev_b32 v4, 5, v2")
    e("v_mul_lo_u32 v4, v4, s62")
    e("v_add_u32 v3, v3, v4")
    e("s_barrier")
    for i in range(8):
        e(f"buffer_load_dwordx4 v[{32+4*i}:{35+4*i}], v3, {ws(A)}, s{54+i} offen nt")
    e("v_lshrrev_b32 v7, 5, v2")
    e("v_lshlrev_b32 v7, 5, v7")
    e("s_lshl_b32 s63, s53, 2")
    e("v_add_u32 v7, s63, v7")
    e("v_and_b32 v80, 31, v2")
    e("v_lshlrev_b32 v80, 5, v80")
    e("v_lshrrev_b32 v81, 5, v2")
    e("v_lshlrev_b32 v81, 4, v81")
    e("v_add_u32 v80, v80, v81")
    e(f"s_lshl_b32 s63, s{S_WAVE}, 10")
    e(f"s_add_u32 s63, s63, {RED}")
    e("v_add_u32 v80, s63, v80")
    e(f"s_cmp_lg_u32 s{S_WAVE}, 0")
    e("s_cbranch_scc1 L_p1_b")
    e("s_waitcnt vmcnt(8)")
    emit_ln(e, list(range(8, 17)), list(range(17, 24)) + [72], 63, S_MASK, 6, XN)
    srd(e, SRD_M, 24, 256)
    nonce_fetch_issue(e, 84)
    e("s_waitcnt lgkmcnt(0)")
    e.label("L_p1_b")
    st()
    e("s_barrier")
    e(f"ds_read_b128 v[24:27], v7 offset:{XN}")
    e(f"ds_read_b128 v[28:31], v7 offset:{XN+16}")
    e(f"s_cmp_lg_u32 s{S_WAVE}, 0")
    e("s_cbranch_scc1 L_p1_c")
    e("s_waitcnt vmcnt(0)")
    e.label("L_p1_c")
    for i in range(8):
        if i == 0:
            e("s_waitcnt lgkmcnt(0)")
        e(f"s_waitcnt vmcnt({7-i})")
        for j in range(4):
            d = 32 + 4 * i + j
            ta, tb = 72 + 2 * (j % 2), 73 + 2 * (j % 2)
            e(f"v_lshlrev_b32 v{ta}, 16, v{d}")
            e(f"v_and_b32 v{tb}, s{S_MASK}, v{d}")
            if i == 0:
                e(f"v_mul_f32 v{64+2*j}, v{24+i}, v{ta}")
                e(f"v_mul_f32 v{65+2*j}, v{24+i}, v{tb}")
            else:
                e(f"v_fmac_f32 v{64+2*j}, v{24+i}, v{ta}")
                e(f"v_fmac_f32 v{65+2*j}, v{24+i}, v{tb}")
    st()
    kv_issue(e, "k1", "k")
    for j in range(4):
        e(f"v_permlane32_swap_b32 v{64+j}, v{68+j}")
    for j in range(4):
        e(f"v_add_f32 v{76+j}, v{64+j}, v{68+j}")
    e("ds_write_b128 v80, v[76:79]")
    e(f"s_cmp_lg_u32 s{S_WAVE}, 0")
    e("s_cbranch_scc1 L_p1_d")
    nonce_finish(e, 84, "a")
    e.label("L_p1_d")
    e("s_waitcnt lgkmcnt(0)")
    e("s_barrier")
    e(f"s_cmp_lg_u32 s{S_WAVE}, 0")
    e("s_cbranch_scc1 L_p1_e")
    e("v_lshlrev_b32 v1, 3, v2")
    for h in range(2):
        for s in range(9):
            e(f"ds_read_b64 v[{32+18*h+2*s}:{33+18*h+2*s}], v1 offset:{RED + 1024*s + 512*h}")
    e(f"s_mul_i32 s54, s48, {NG1}")
    e("s_lshl_b32 s55, s49, 7")
    e("s_add_u32 s54, s54, s55")
    e("s_lshl_b32 s54, s54, 4")
    if P1T:
        e(f"s_add_u32 s54, s54, {P1T}")
    e("v_lshlrev_b32 v1, 4, v2")
    set_tag(e, 76)
    set_tag(e, 80)
    for h in range(2):
        e(f"s_waitcnt lgkmcnt({9 - 9*h})")
        b = 32 + 18 * h
        e(f"v_pk_add_f32 v[{b}:{b+1}], v[{b}:{b+1}], v[{b+2}:{b+3}]")
        e(f"v_pk_add_f32 v[{b+4}:{b+5}], v[{b+4}:{b+5}], v[{b+6}:{b+7}]")
        e(f"v_pk_add_f32 v[{b+8}:{b+9}], v[{b+8}:{b+9}], v[{b+10}:{b+11}]")
        e(f"v_pk_add_f32 v[{b+12}:{b+13}], v[{b+12}:{b+13}], v[{b+14}:{b+15}]")
        e(f"v_pk_add_f32 v[{b}:{b+1}], v[{b}:{b+1}], v[{b+4}:{b+5}]")
        e(f"v_pk_add_f32 v[{b+8}:{b+9}], v[{b+8}:{b+9}], v[{b+12}:{b+13}]")
        e(f"v_pk_add_f32 v[{b}:{b+1}], v[{b}:{b+1}], v[{b+16}:{b+17}]")
        e(f"v_pk_add_f32 v[{76+4*h}:{77+4*h}], v[{b}:{b+1}], v[{b+8}:{b+9}]")
        e(f"buffer_store_dwordx4 v[{76+4*h}:{79+4*h}], v1, {ws()}, s54 offen offset:{1024*h} sc1")
    e("s_branch L_p1_e")
    e.label("L_p1_skip")
    kv_issue(e, "k2", "k")
    e(f"s_cmp_lg_u32 s{S_WAVE}, 0")
    e("s_cbranch_scc1 L_p1_skip_b")
    srd(e, SRD_M, 24, 256)
    nonce_fetch_issue(e, 84)
    nonce_finish(e, 84, "b")
    e("s_waitcnt lgkmcnt(0)")
    e.label("L_p1_skip_b")
    e("s_barrier")
    e.label("L_p1_e")
    nonce_read(e, 84)
    st()


def od_issue(e):
    e("v_lshlrev_b32 v3, 4, v0")
    srd(e, SRD_A, 12, 4718592)
    e(f"s_mov_b32 s{SRD_B}, s20")
    e(f"s_mov_b32 s{SRD_B+1}, s21")
    e("s_mul_i32 s56, s2, 20736")
    e(f"s_add_u32 s{SRD_B+2}, s56, 20736")
    e(f"s_mov_b32 s{SRD_B+3}, 0x20000")
    e("s_mul_i32 s57, s2, 18432")
    e("s_add_u32 s58, s57, 9216")
    e("s_add_u32 s59, s56, 9216")
    e("s_add_u32 s60, s56, 18432")
    for n, (srd_, so) in enumerate(((SRD_A, 57), (SRD_A, 58), (SRD_B, 56), (SRD_B, 59), (SRD_B, 60))):
        e(f"buffer_load_dwordx4 v[{96+4*n}:{99+4*n}], v3, {ws(srd_)}, s{so} offen nt")


def phase2(e, st):
    QL, OACC, ML = L_QL, L_OACC, L_ML
    kv_issue(e, "v1", "v")
    e("s_lshr_b32 s48, s2, 4")
    e("s_and_b32 s49, s2, 15")
    e(f"s_cmp_eq_u32 s{S_WAVE}, 0")
    e("s_cbranch_scc1 L_p2_helper")
    e(f"s_sub_u32 s50, s{S_WAVE}, 1")
    e("v_lshrrev_b32 v5, 4, v2")
    e("v_and_b32 v70, 7, v2")
    e("v_and_b32 v71, 1, v70")
    e("v_lshlrev_b32 v71, 4, v71")
    e("v_mov_b32 v72, 0xffff")
    e("v_lshlrev_b32 v72, v71, v72")
    e("v_lshrrev_b32 v70, 1, v70")
    for k in range(4):
        e(f"v_cmp_eq_u32 vcc, {k}, v70")
        e(f"v_cndmask_b32 v{8+k}, 0, v72, vcc")
    e("v_bfe_u32 v6, v2, 3, 1")
    e("v_lshlrev_b32 v6, 6, v6")
    e("v_lshlrev_b32 v70, 2, v5")
    e("v_add_u32 v6, v6, v70")
    e("v_bfe_u32 v73, v2, 2, 1")
    e("v_lshlrev_b32 v73, 8, v73")
    e("v_lshlrev_b32 v70, 4, v5")
    e("v_add_u32 v73, v73, v70")
    e("v_lshrrev_b32 v7, 5, v2")
    e("v_lshlrev_b32 v7, 9, v7")
    e("v_and_b32 v70, 15, v2")
    e("v_lshlrev_b32 v70, 5, v70")
    e("v_add_u32 v7, v7, v70")
    e("v_bfe_u32 v70, v2, 4, 1")
    e("v_lshlrev_b32 v71, 4, v70")
    e("v_add_u32 v7, v7, v71")
    e("s_lshl_b32 s52, s50, 10")
    e(f"s_add_u32 s52, s52, {OACC}")
    e("v_add_u32 v7, s52, v7")
    e("v_lshlrev_b32 v69, 3, v70")
    e("s_lshl_b32 s52, s50, 4")
    e(f"s_add_u32 s52, s52, {ML}")
    e("v_add_u32 v69, s52, v69")
    e("s_barrier")
    st()
    for i in range(4):
        e(f"ds_read_b128 v[{44+4*i}:{47+4*i}], v73 offset:{QL + 64*i}")
    od_issue(e)
    e("s_waitcnt vmcnt(9) lgkmcnt(0)")
    st()
    for i in range(4):
        c = "0" if i == 0 else "v[60:63]"
        e(f"v_mfma_f32_16x16x32_bf16 v[60:63], v[{44+4*i}:{47+4*i}], v[{12+4*i}:{15+4*i}], {c}")
    e("v_cvt_pk_bf16_f32 v70, v60, v60")
    e("v_lshlrev_b32 v70, 16, v70")
    e(f"v_mul_f32 v70, s{S_SCALE}, v70")
    rb(e, 70, 71)
    e("v_mov_b32 v74, v70")
    row_allreduce(e, "v_max_f32", 74)
    e("v_sub_f32 v70, v70, v74")
    e(f"v_mul_f32 v70, s{S_LOG2E}, v70")
    e("v_exp_f32 v70, v70")
    e("v_mov_b32 v75, v70")
    row_allreduce(e, "v_add_f32", 75)
    e("v_cvt_pk_bf16_f32 v71, v70, v70")
    e("v_lshlrev_b32 v72, 16, v71")
    e("v_sub_f32 v72, v70, v72")
    e("v_cvt_pk_bf16_f32 v72, v72, v72")
    e("ds_write_b64 v69, v[74:75]")
    for i in range(4):
        e(f"ds_bpermute_b32 v{76+i}, v6, v71 offset:{16*i}")
    for i in range(4):
        e(f"ds_bpermute_b32 v{88+i}, v6, v72 offset:{16*i}")
    for i in range(4):
        e(f"s_waitcnt vmcnt({8-i}) lgkmcnt({7-i})")
        for k in range(4):
            e(f"v_and_b32 v{80+k}, v{8+k}, v{76+i}")
        c = "0" if i == 0 else "v[64:67]"
        e(f"v_mfma_f32_16x16x32_bf16 v[64:67], v[80:83], v[{28+4*i}:{31+4*i}], {c}")
    for i in range(4):
        e(f"s_waitcnt lgkmcnt({3-i})")
        for k in range(4):
            e(f"v_and_b32 v{92+k}, v{8+k}, v{88+i}")
        e(f"v_mfma_f32_16x16x32_bf16 v[64:67], v[92:95], v[{28+4*i}:{31+4*i}], v[64:67]")
    e("ds_write_b128 v7, v[64:67]")
    e("s_waitcnt lgkmcnt(0)")
    st()
    e("s_barrier")
    e("s_branch L_p2_comb")
    e.label("L_p2_helper")
    e("v_lshlrev_b32 v3, 4, v2")
    e("s_lshl_b32 s50, s48, 11")
    if P1T:
        e(f"s_add_u32 s50, s50, {P1T}")
    e("s_mov_b32 s51, 0")
    e.label("L_p2_retry")
    for ks in range(4):
        e(f"s_add_u32 s{52+ks}, s50, {ks * NG1 * 16}")
        e(f"buffer_load_dwordx4 v[{12+8*ks}:{15+8*ks}], v3, {ws()}, s{52+ks} offen sc1")
        e(f"buffer_load_dwordx4 v[{16+8*ks}:{19+8*ks}], v3, {ws()}, s{52+ks} offen offset:1024 sc1")
    tagchk_init(e, 44)
    for n in range(8):
        e(f"s_waitcnt vmcnt({7-n})")
        tagchk(e, 44, 12 + 4 * n, 45, 46)
    spin_tail(e, 44, 51, "L_p2_retry", "L_p2_ok")
    e.label("L_p2_ok")
    for h in range(2):
        b = 12 + 4 * h
        e(f"v_pk_add_f32 v[{b}:{b+1}], v[{b}:{b+1}], v[{b+8}:{b+9}]")
        e(f"v_pk_add_f32 v[{b+16}:{b+17}], v[{b+16}:{b+17}], v[{b+24}:{b+25}]")
        e(f"v_pk_add_f32 v[{b}:{b+1}], v[{b}:{b+1}], v[{b+16}:{b+17}]")
        e(f"v_cvt_pk_bf16_f32 v{48+h}, v{b}, v{b+1}")
    e("v_lshlrev_b32 v4, 2, v2")
    e(f"ds_write_b32 v4, v48 offset:{QL}")
    e(f"ds_write_b32 v4, v49 offset:{QL+256}")
    e("s_waitcnt lgkmcnt(0)")
    e("s_barrier")
    od_issue(e)
    e("s_barrier")
    e.label("L_p2_comb")
    e(f"s_cmp_ge_u32 s{S_WAVE}, 2")
    e("s_cbranch_scc1 L_p2_end")
    e(f"s_lshl_b32 s50, s{S_WAVE}, 3")
    e(f"s_add_u32 s50, s50, {ML}")
    e("v_mov_b32 v3, s50")
    e("v_lshlrev_b32 v4, 3, v2")
    e(f"s_lshl_b32 s50, s{S_WAVE}, 9")
    e("v_add_u32 v4, s50, v4")
    for w in range(8):
        e(f"ds_read_b64 v[{12+2*w}:{13+2*w}], v3 offset:{16*w}")
    for w in range(8):
        e(f"ds_read_b64 v[{28+2*w}:{29+2*w}], v4 offset:{OACC + 1024*w}")
    e("s_lshl_b32 s51, s48, 1")
    e(f"s_add_u32 s51, s51, s{S_WAVE}")
    e("s_lshl_b32 s51, s51, 4")
    e("s_add_u32 s51, s51, s49")
    e("s_lshl_b32 s52, s51, 10")
    e(f"s_add_u32 s52, s52, {PACC}")
    e("s_lshl_b32 s53, s51, 7")
    e(f"s_add_u32 s53, s53, {PML}")
    e("s_waitcnt lgkmcnt(8)")
    e("v_max3_f32 v48, v12, v14, v16")
    e("v_max3_f32 v48, v48, v18, v20")
    e("v_max3_f32 v48, v48, v22, v24")
    e("v_max_f32 v48, v48, v26")
    for w in range(8):
        e(f"v_sub_f32 v{52+w}, v{12+2*w}, v48")
    for w in range(8):
        e(f"v_mul_f32 v{52+w}, s{S_LOG2E}, v{52+w}")
    for w in range(8):
        e(f"v_exp_f32 v{52+w}, v{52+w}")
    e("v_mul_f32 v49, v52, v13")
    for w in range(1, 8):
        e(f"v_fmac_f32 v49, v{52+w}, v{13+2*w}")
    set_tag(e, 48)
    e("s_waitcnt lgkmcnt(0)")
    e("v_mul_f32 v60, v52, v28")
    e("v_mul_f32 v61, v52, v29")
    for w in range(1, 8):
        e(f"v_fmac_f32 v60, v{52+w}, v{28+2*w}")
        e(f"v_fmac_f32 v61, v{52+w}, v{29+2*w}")
    set_tag(e, 60)
    e("v_lshlrev_b32 v6, 4, v2")
    e(f"buffer_store_dwordx4 v[60:63], v6, {ws()}, s52 offen sc1")
    e("s_mov_b64 s[54:55], exec")
    e("s_mov_b64 exec, 1")
    e(f"buffer_store_dwordx4 v[48:51], v6, {ws()}, s53 offen sc1")
    e("s_mov_b64 exec, s[54:55]")
    e.label("L_p2_end")
    st()


def phase3(e, st):
    e("v_mul_u32_u24 v4, 911, v0")
    e("v_lshrrev_b32 v4, 16, v4")
    e("v_mul_u32_u24 v5, 72, v4")
    e("v_sub_u32 v5, v0, v5")
    e(f"s_cmp_lg_u32 s{S_WAVE}, 0")
    e("s_cbranch_scc1 L_p3_a")
    e("s_lshr_b32 s53, s2, 3")
    e("s_and_b32 s54, s2, 7")
    e("v_and_b32 v6, 15, v2")
    e("v_lshrrev_b32 v7, 4, v2")
    e("v_lshlrev_b32 v8, 10, v6")
    e("v_lshl_add_u32 v8, v7, 4, v8")
    e("s_lshl_b32 s55, s53, 14")
    e("s_lshl_b32 s56, s54, 7")
    e("s_add_u32 s55, s55, s56")
    e(f"s_add_u32 s55, s55, {PACC}")
    e("v_lshlrev_b32 v9, 7, v6")
    e("s_lshl_b32 s56, s53, 11")
    e(f"s_add_u32 s56, s56, {PML}")
    e("v_min_u32 v10, 8, v2")
    e("v_lshlrev_b32 v11, 4, v10")
    e("s_mul_i32 s57, s2, 144")
    e("s_mov_b32 s58, 0")
    e.label("L_p3_retry")
    e(f"buffer_load_dwordx4 v[12:15], v9, {ws()}, s56 offen sc1")
    e(f"buffer_load_dwordx4 v[16:19], v8, {ws()}, s55 offen sc1")
    e(f"buffer_load_dwordx4 v[20:23], v8, {ws()}, s55 offen offset:64 sc1")
    for ks in range(4):
        e(f"s_add_u32 s59, s57, {P1T + (ks*NG1 + 2048)*16}")
        e(f"buffer_load_dwordx4 v[{32+8*ks}:{35+8*ks}], v11, {ws()}, s59 offen sc1")
        e(f"s_add_u32 s60, s57, {P1T + (ks*NG1 + 4352)*16}")
        e(f"buffer_load_dwordx4 v[{36+8*ks}:{39+8*ks}], v11, {ws()}, s60 offen sc1")
    tagchk_init(e, 24)
    quads = [12, 16, 20] + [32 + 4 * i for i in range(8)]
    for n, q in enumerate(quads):
        e(f"s_waitcnt vmcnt({10-n})")
        tagchk(e, 24, q, 25, 26)
    spin_tail(e, 24, 58, "L_p3_retry", "L_p3_ok")
    e.label("L_p3_ok")
    st()
    e("v_mov_b32 v14, v12")
    row_allreduce(e, "v_max_f32", 14)
    e("v_sub_f32 v12, v12, v14")
    e(f"v_mul_f32 v12, s{S_LOG2E}, v12")
    e("v_exp_f32 v12, v12")
    e("v_mul_f32 v13, v12, v13")
    row_allreduce(e, "v_add_f32", 13)
    e("v_rcp_f32 v14, v13")
    e("v_fma_f32 v15, -v13, v14, 1.0")
    e("v_fma_f32 v14, v15, v14, v14")
    e("v_mul_f32 v12, v12, v14")
    vals = [16, 17, 20, 21]
    for r in vals:
        e(f"v_mul_f32 v{r}, v12, v{r}")
    for sh in (8, 4, 2, 1):
        for r in vals:
            e(f"v_add_f32_dpp v{r}, v{r}, v{r} row_ror:{sh} row_mask:0xf bank_mask:0xf")
    rb2(e, 16, 17, 24, S_MASK)
    rb2(e, 20, 21, 24, S_MASK)
    e("v_lshlrev_b32 v7, 4, v7")
    e(f"ds_write_b32 v7, v16 offset:{L_XO}")
    e(f"ds_write_b32 v7, v17 offset:{L_XO+8}")
    e(f"ds_write_b32 v7, v20 offset:{L_XO+4}")
    e(f"ds_write_b32 v7, v21 offset:{L_XO+12}")
    e("v_pk_add_f32 v[32:33], v[32:33], v[40:41]")
    e("v_pk_add_f32 v[48:49], v[48:49], v[56:57]")
    e("v_pk_add_f32 v[32:33], v[32:33], v[48:49]")
    e("v_pk_add_f32 v[36:37], v[36:37], v[44:45]")
    e("v_pk_add_f32 v[52:53], v[52:53], v[60:61]")
    e("v_pk_add_f32 v[36:37], v[36:37], v[52:53]")
    rb2(e, 32, 33, 24, S_MASK)
    rb2(e, 36, 37, 24, S_MASK)
    e("s_mov_b32 s59, 0xc2fc0000")
    for r in (32, 33):
        e(f"v_mul_f32 v24, s{S_LOG2E}, v{r}")
        e("v_max_f32 v24, s59, v24")
        e("v_exp_f32 v24, -v24")
        e("v_add_f32 v24, 1.0, v24")
        e("v_rcp_f32 v25, v24")
        e("v_fma_f32 v26, -v24, v25, 1.0")
        e("v_fma_f32 v25, v26, v25, v25")
        e(f"v_mul_f32 v{r}, v{r}, v25")
    rb2(e, 32, 33, 24, S_MASK)
    e("v_mul_f32 v32, v32, v36")
    e("v_mul_f32 v33, v33, v37")
    rb2(e, 32, 33, 24, S_MASK)
    e("v_lshlrev_b32 v24, 1, v10")
    e("v_and_b32 v25, 7, v24")
    e("v_lshlrev_b32 v25, 4, v25")
    e("v_lshrrev_b32 v26, 3, v24")
    e("v_lshl_add_u32 v25, v26, 2, v25")
    e(f"ds_write_b32 v25, v32 offset:{L_XD}")
    e(f"ds_write_b32 v25, v33 offset:{L_XD+16}")
    e("v_subrev_u32 v24, 16, v2")
    e("v_lshlrev_b32 v24, 4, v24")
    e("v_mov_b32 v25, 0")
    e("v_cmp_gt_u32 vcc, 8, v24")
    e("v_subrev_u32 v26, 18, v2")
    e("v_cmp_gt_u32 vcc, 6, v26")
    e("s_and_saveexec_b64 s[60:61], vcc")
    e(f"ds_write_b32 v24, v25 offset:{L_XD+8}")
    e("s_mov_b64 exec, s[60:61]")
    e("s_waitcnt lgkmcnt(0)")
    e.label("L_p3_a")
    e("s_barrier")
    st()
    e("v_lshlrev_b32 v6, 3, v4")
    e(f"ds_read_b64 v[24:25], v6 offset:{L_XO}")
    e("v_lshlrev_b32 v6, 4, v4")
    e(f"ds_read_b96 v[28:30], v6 offset:{L_XD}")
    e("v_mul_u32_u24 v8, 2304, v4")
    e("v_lshl_add_u32 v8, v5, 5, v8")
    plan = [(24, 52, True), (25, 52, False), (28, 60, True), (29, 60, False), (30, 60, False)]
    for n, (xv, acc, first) in enumerate(plan):
        if n == 0:
            e("s_waitcnt vmcnt(0) lgkmcnt(0)")
        for j in range(4):
            d = 96 + 4 * n + j
            ta, tb = 68 + 2 * (j % 2), 69 + 2 * (j % 2)
            e(f"v_lshlrev_b32 v{ta}, 16, v{d}")
            e(f"v_and_b32 v{tb}, s{S_MASK}, v{d}")
            if first:
                e(f"v_mul_f32 v{acc+2*j}, v{xv}, v{ta}")
                e(f"v_mul_f32 v{acc+2*j+1}, v{xv}, v{tb}")
            else:
                e(f"v_fmac_f32 v{acc+2*j}, v{xv}, v{ta}")
                e(f"v_fmac_f32 v{acc+2*j+1}, v{xv}, v{tb}")
    e(f"ds_write_b128 v8, v[52:55] offset:{L_REDS}")
    e(f"ds_write_b128 v8, v[56:59] offset:{L_REDS+16}")
    e(f"ds_write_b128 v8, v[60:63] offset:{L_REDF}")
    e(f"ds_write_b128 v8, v[64:67] offset:{L_REDF+16}")
    e("s_waitcnt lgkmcnt(0)")
    st()
    e("s_barrier")
    e("v_cmp_le_u32 vcc, 288, v0")
    e("v_mov_b32 v6, 0")
    e("v_mov_b32 v7, 288")
    e("v_cndmask_b32 v7, 0, v7, vcc")
    e("v_sub_u32 v6, v0, v7")
    e(f"v_mov_b32 v9, {L_REDF - L_REDS}")
    e("v_cndmask_b32 v9, 0, v9, vcc")
    e("v_lshl_add_u32 v9, v6, 3, v9")
    for r in range(8):
        e(f"ds_read_b64 v[{32+2*r}:{33+2*r}], v9 offset:{L_REDS + 2304*r}")
    e(f"v_mov_b32 v10, {PARTF - PARTS}")
    e("v_cndmask_b32 v10, 0, v10, vcc")
    e("v_lshl_add_u32 v10, v6, 4, v10")
    e("s_mul_i32 s48, s2, 4608")
    e(f"s_add_u32 s48, s48, {PARTS}")
    e("s_waitcnt lgkmcnt(4)")
    e("v_pk_add_f32 v[32:33], v[32:33], v[34:35]")
    e("v_pk_add_f32 v[36:37], v[36:37], v[38:39]")
    e("v_pk_add_f32 v[32:33], v[32:33], v[36:37]")
    e("s_waitcnt lgkmcnt(0)")
    e("v_pk_add_f32 v[40:41], v[40:41], v[42:43]")
    e("v_pk_add_f32 v[44:45], v[44:45], v[46:47]")
    e("v_pk_add_f32 v[40:41], v[40:41], v[44:45]")
    e("v_pk_add_f32 v[48:49], v[32:33], v[40:41]")
    set_tag(e, 48)
    e(f"buffer_store_dwordx4 v[48:51], v10, {ws()}, s48 offen sc1")
    st()


def phase4(e, st):
    e("s_cmp_ge_u32 s2, 144")
    e("s_cbranch_scc1 L_end")
    e(f"s_cmp_lg_u32 s{S_WAVE}, 0")
    e("s_cbranch_scc1 L_end")
    srd(e, SRD_A, 4, 1152)
    srd(e, SRD_B, 22, 1152)
    e("v_and_b32 v3, 1, v2")
    e("v_lshlrev_b32 v4, 2, v3")
    e("s_lshl_b32 s48, s2, 3")
    e(f"buffer_load_dword v80, v4, {ws(SRD_A)}, s48 offen")
    e("v_lshrrev_b32 v5, 1, v2")
    e("v_mul_u32_u24 v5, 4608, v5")
    e("v_lshl_add_u32 v5, v3, 4, v5")
    e("s_lshl_b32 s49, s2, 5")
    e("s_mov_b32 s50, 0")
    for i in range(8):
        e(f"s_add_u32 s{52+i}, s49, {PARTS + i*32*4608}")
        e(f"s_add_u32 s{60+i}, s49, {PARTF + i*32*4608}")
    e.label("L_p4_retry")
    for i in range(8):
        e(f"buffer_load_dwordx4 v[{8+4*i}:{11+4*i}], v5, {ws()}, s{52+i} offen sc1")
    for i in range(8):
        e(f"buffer_load_dwordx4 v[{40+4*i}:{43+4*i}], v5, {ws()}, s{60+i} offen sc1")
    tagchk_init(e, 72)
    for n in range(16):
        e(f"s_waitcnt vmcnt({15-n})")
        tagchk(e, 72, 8 + 4 * n, 73, 74)
    spin_tail(e, 72, 50, "L_p4_retry", "L_p4_ok")
    e.label("L_p4_ok")
    for b in (8, 40):
        e(f"v_pk_add_f32 v[{b}:{b+1}], v[{b}:{b+1}], v[{b+4}:{b+5}]")
        e(f"v_pk_add_f32 v[{b+8}:{b+9}], v[{b+8}:{b+9}], v[{b+12}:{b+13}]")
        e(f"v_pk_add_f32 v[{b+16}:{b+17}], v[{b+16}:{b+17}], v[{b+20}:{b+21}]")
        e(f"v_pk_add_f32 v[{b+24}:{b+25}], v[{b+24}:{b+25}], v[{b+28}:{b+29}]")
        e(f"v_pk_add_f32 v[{b}:{b+1}], v[{b}:{b+1}], v[{b+8}:{b+9}]")
        e(f"v_pk_add_f32 v[{b+16}:{b+17}], v[{b+16}:{b+17}], v[{b+24}:{b+25}]")
        e(f"v_pk_add_f32 v[{b}:{b+1}], v[{b}:{b+1}], v[{b+16}:{b+17}]")
    vals = [8, 9, 40, 41]
    for sh in (8, 4, 2):
        for r in vals:
            e(f"v_add_f32_dpp v{r}, v{r}, v{r} row_ror:{sh} row_mask:0xf bank_mask:0xf")
    for swap in ("v_permlane16_swap_b32", "v_permlane32_swap_b32"):
        for k, r in enumerate(vals):
            e(f"v_mov_b32 v{12+k}, v{r}")
        for k, r in enumerate(vals):
            e(f"{swap} v{r}, v{12+k}")
        for k, r in enumerate(vals):
            e(f"v_add_f32 v{r}, v{r}, v{12+k}")
    rb2(e, 8, 9, 12, S_MASK)
    rb2(e, 40, 41, 12, S_MASK)
    e("s_mov_b32 s51, 0xc2fc0000")
    for r in (40, 41):
        e(f"v_mul_f32 v12, s{S_LOG2E}, v{r}")
        e("v_max_f32 v12, s51, v12")
        e("v_exp_f32 v12, -v12")
        e("v_add_f32 v12, 1.0, v12")
        e("v_rcp_f32 v13, v12")
        e("v_fma_f32 v14, -v12, v13, 1.0")
        e("v_fma_f32 v13, v14, v13, v13")
        e(f"v_mul_f32 v{r}, v{r}, v13")
    rb2(e, 40, 41, 12, S_MASK)
    e("v_mul_f32 v8, v8, v40")
    e("v_mul_f32 v9, v9, v41")
    rb2(e, 8, 9, 12, S_MASK)
    e("v_lshlrev_b32 v12, 16, v80")
    e(f"v_and_b32 v13, s{S_MASK}, v80")
    e("v_add_f32 v8, v12, v8")
    e("v_add_f32 v9, v13, v9")
    e("v_cvt_pk_bf16_f32 v8, v8, v9")
    e("s_mov_b64 exec, 3")
    e(f"buffer_store_dword v8, v4, {ws(SRD_B)}, s48 offen")
    e("s_mov_b64 exec, -1")


def build(stamps=False, prefetch=True):
    e = Emitter()
    st = St(e, stamps)
    e(kernel_head(NAME))
    e.label(NAME)
    e(f"s_cmp_ge_u32 s2, {NWG}")
    e("s_cbranch_scc1 L_exit")
    st()
    prologue(e, st, prefetch)
    phase1(e, st)
    phase2(e, st)
    phase3(e, st)
    phase4(e, st)
    e.label("L_end")
    st.flush(120, 48)
    e.label("L_exit")
    e("s_endpgm")
    e.label("L_code_end")
    e(kernel_desc(NAME, 128, 102))
    out = HEADER + f"; @launch grid=({NWG},1,1) block=(576,1,1) lds={LDS_BYTES}\n" + '.amdgcn_target "amdgcn-amd-amdhsa--gfx950"\n' + e.text()
    return out, st.n


if __name__ == "__main__":
    stamps = "--stamps" in sys.argv
    path = [a for a in sys.argv[1:] if not a.startswith("--")][0]
    txt, n = build(stamps, "--noprefetch" not in sys.argv)
    open(path, "w").write(txt)
    print("stamps:", n)
```

```python
import sys
from asmgen import Emitter
from common import *

NAME = "recurrent_scan__sliding_block_cached__swiglu_ffn__decode_kernel"
NWG = 256
P1T = 0x000000
PACC = 0x080000
PML = 0x100000
PARTS = 0x200000
PARTF = 0x400000
STAMP_OFF = 0x800000
WS_BYTES = 268435456
NG1 = 6656

L_XN = 0
L_RED1 = 2304
L_QL = 12288
L_OACC = 12800
L_ML = 20992
L_NONCE = 21248
L_XO = 21504
L_XD = 21632
L_REDS = 22528
L_REDF = 40960
LDS_BYTES = 59392

S_WAVE, S_MASK, S_NLO, S_NHI = 28, 29, 30, 31
SRD_A, SRD_B, SRD_WS, SRD_M = 32, 36, 40, 44
S_SCALE, S_LOG2E = 70, 71
NSTAMP = 14
S_ST = 72
SPIN_LIMIT = 400000


class St:
    def __init__(self, e, on):
        self.e, self.on, self.n = e, on, 0

    def __call__(self):
        if not self.on:
            return
        i = self.n
        self.n += 1
        assert i < NSTAMP
        self.e(f"s_memrealtime s[{S_ST+2*i}:{S_ST+2*i+1}]")

    def flush(self, vt, s_tmp):
        if not self.on:
            return
        e = self.e
        self()
        e("s_waitcnt lgkmcnt(0) vmcnt(0)")
        e("s_mov_b64 exec, 1")
        e(f"s_lshl_b32 s{s_tmp}, s2, 4")
        e(f"s_add_u32 s{s_tmp}, s{s_tmp}, s{S_WAVE}")
        e(f"s_lshl_b32 s{s_tmp}, s{s_tmp}, 7")
        e(f"s_add_u32 s{s_tmp}, s{s_tmp}, {STAMP_OFF}")
        e(f"v_mov_b32 v{vt+4}, 0")
        n = self.n + (self.n & 1)
        for i in range(0, n, 2):
            e(f"v_mov_b32 v{vt}, s{S_ST+2*i}")
            e(f"v_mov_b32 v{vt+1}, s{S_ST+2*i+1}")
            e(f"v_mov_b32 v{vt+2}, s{S_ST+2*i+2}")
            e(f"v_mov_b32 v{vt+3}, s{S_ST+2*i+3}")
            e(f"buffer_store_dwordx4 v[{vt}:{vt+3}], v{vt+4}, s[{SRD_WS}:{SRD_WS+3}], s{s_tmp} offen offset:{8*i}")
            e("s_nop 1")


def ws(r=SRD_WS):
    return f"s[{r}:{r+3}]"


def tagchk_init(e, vbad):
    e(f"v_mov_b32 v{vbad}, 0")


def tagchk(e, vbad, q, t0, t1):
    e(f"v_xor_b32 v{t0}, s{S_NLO}, v{q+2}")
    e(f"v_xor_b32 v{t1}, s{S_NHI}, v{q+3}")
    e(f"v_or3_b32 v{vbad}, v{vbad}, v{t0}, v{t1}")


def spin_tail(e, vbad, s_cnt, lbl_retry, lbl_ok):
    e(f"v_cmp_ne_u32 vcc, 0, v{vbad}")
    e("s_cmp_eq_u64 vcc, 0")
    e(f"s_cbranch_scc1 {lbl_ok}")
    e(f"s_add_u32 s{s_cnt}, s{s_cnt}, 1")
    e("s_sleep 1")
    e(f"s_cmp_lt_u32 s{s_cnt}, {SPIN_LIMIT}")
    e(f"s_cbranch_scc1 {lbl_retry}")


def set_tag(e, q):
    e(f"v_mov_b32 v{q+2}, s{S_NLO}")
    e(f"v_mov_b32 v{q+3}, s{S_NHI}")


def prologue(e, st, prefetch):
    e("s_getpc_b64 s[48:49]")
    e.label("L_pfbase")
    e(f"s_load_dwordx8 s[4:11], s[0:1], {KA_X}")
    e(f"s_load_dwordx2 s[12:13], s[0:1], {KA_WO}")
    e(f"s_load_dwordx8 s[16:23], s[0:1], {KA_WG}")
    e(f"s_load_dwordx4 s[24:27], s[0:1], {KA_DBG}")
    e("v_lshrrev_b32 v1, 6, v0")
    e("v_and_b32 v2, 63, v0")
    e(f"v_readfirstlane_b32 s{S_WAVE}, v1")
    if prefetch:
        e("v_lshlrev_b32 v3, 4, v0")
        e("s_mov_b32 s50, L_code_end-L_pfbase")
        e("s_mov_b32 s51, 0x20000")
        e("buffer_load_dwordx4 v[116:119], v3, s[48:51], 0 offen")
    e(f"s_mov_b32 s{S_MASK}, 0xffff0000")
    e(f"s_mov_b32 s{S_SCALE}, {C_SCALE}")
    e(f"s_mov_b32 s{S_LOG2E}, {C_LOG2E}")
    e("s_waitcnt lgkmcnt(0)")
    st()
    srd(e, SRD_WS, 26, WS_BYTES)
    srd(e, SRD_B, 24, 256)
    e("s_or_b32 s50, s2, s28")
    e("s_cmp_lg_u32 s50, 0")
    e("s_cbranch_scc1 L_nopub")
    e(f"s_memrealtime s[{S_NLO}:{S_NHI}]")
    e("s_waitcnt lgkmcnt(0)")
    e(f"s_or_b32 s{S_NLO}, s{S_NLO}, 1")
    e(f"v_mov_b32 v8, s{S_NLO}")
    e(f"v_mov_b32 v9, s{S_NHI}")
    e("v_mov_b32 v10, 0")
    e("s_mov_b64 exec, 1")
    e(f"buffer_store_dwordx2 v[8:9], v10, s[{SRD_B}:{SRD_B+3}], 0 offen sc1")
    e("s_mov_b64 exec, -1")
    e.label("L_nopub")


def nonce_fetch_issue(e, vq):
    e(f"v_mov_b32 v{vq+2}, 0")
    e(f"buffer_load_dwordx2 v[{vq}:{vq+1}], v{vq+2}, s[{SRD_M}:{SRD_M+3}], 0 offen sc1")


def nonce_finish(e, vq, tag):
    e("s_mov_b32 s50, 0")
    e(f"v_mov_b32 v{vq+2}, 0")
    e.label(f"L_nonce_chk{tag}")
    e("s_waitcnt vmcnt(0)")
    e(f"v_readfirstlane_b32 s{S_NLO}, v{vq}")
    e(f"v_readfirstlane_b32 s{S_NHI}, v{vq+1}")
    e(f"s_cmp_lg_u32 s{S_NLO}, 0")
    e(f"s_cbranch_scc1 L_nonce_ok{tag}")
    e("s_add_u32 s50, s50, 1")
    e("s_sleep 1")
    e(f"s_cmp_ge_u32 s50, {SPIN_LIMIT}")
    e(f"s_cbranch_scc1 L_nonce_ok{tag}")
    e(f"buffer_load_dwordx2 v[{vq}:{vq+1}], v{vq+2}, s[{SRD_M}:{SRD_M+3}], 0 offen sc1")
    e(f"s_branch L_nonce_chk{tag}")
    e.label(f"L_nonce_ok{tag}")
    e(f"ds_write_b64 v{vq+2}, v[{vq}:{vq+1}] offset:{L_NONCE}")


def nonce_read(e, vq):
    e(f"v_mov_b32 v{vq+2}, 0")
    e(f"ds_read_b64 v[{vq}:{vq+1}], v{vq+2} offset:{L_NONCE}")
    e("s_waitcnt lgkmcnt(0)")
    e(f"v_readfirstlane_b32 s{S_NLO}, v{vq}")
    e(f"v_readfirstlane_b32 s{S_NHI}, v{vq+1}")


def kv_issue(e, tag="a", which="kv"):
    e(f"s_cmp_eq_u32 s{S_WAVE}, 0")
    e(f"s_cbranch_scc1 L_kv_skip{tag}")
    e("s_lshr_b32 s48, s2, 4")
    e("s_and_b32 s49, s2, 15")
    srd(e, SRD_A, 6, 33554432)
    srd(e, SRD_B, 8, 33554432)
    e(f"s_sub_u32 s50, s{S_WAVE}, 1")
    e("s_lshl_b32 s51, s48, 21")
    e("s_lshl_b32 s52, s49, 15")
    e("s_lshl_b32 s53, s50, 12")
    e("s_add_u32 s51, s51, s52")
    e("s_add_u32 s51, s51, s53")
    e("s_add_u32 s51, s51, 0x180000")
    e("v_and_b32 v3, 15, v2")
    e("v_lshlrev_b32 v3, 8, v3")
    e("v_lshrrev_b32 v5, 4, v2")
    e("v_lshlrev_b32 v4, 4, v5")
    e("v_add_u32 v3, v3, v4")
    e("v_lshlrev_b32 v4, 4, v2")
    if "k" in which:
        for i in range(4):
            e(f"buffer_load_dwordx4 v[{12+4*i}:{15+4*i}], v3, {ws(SRD_A)}, s51 offen offset:{64*i} nt")
    if "v" in which:
        for i in range(4):
            e(f"buffer_load_dwordx4 v[{28+4*i}:{31+4*i}], v4, {ws(SRD_B)}, s51 offen offset:{64*16*i} nt")
    e.label(f"L_kv_skip{tag}")


def phase1(e, st):
    XN, RED = L_XN, L_RED1
    e("s_cmp_ge_u32 s2, 208")
    e("s_cbranch_scc1 L_p1_skip")
    e("s_mov_b32 s48, 0")
    for lim in (52, 104, 156):
        e(f"s_cmp_ge_u32 s2, {lim}")
        e("s_addc_u32 s48, s48, 0")
    e("s_mul_i32 s49, s48, 52")
    e("s_sub_u32 s49, s2, s49")
    e("v_mul_u32_u24 v5, 18, v2")
    e("v_mul_u32_u24 v6, 36, v2")
    srd(e, SRD_M, 4, 1152)
    e(f"s_cmp_lg_u32 s{S_WAVE}, 0")
    e("s_cbranch_scc1 L_p1_a")
    for i in range(9):
        e(f"buffer_load_ushort v{8+i}, v5, {ws(SRD_M)}, 0 offen offset:{2*i}")
    e.label("L_p1_a")
    A = SRD_A
    e(f"s_mov_b32 s{A}, s10")
    e(f"s_mov_b32 s{A+1}, s11")
    e("s_mov_b32 s50, 8192")
    e("s_mov_b32 s52, 0")
    e("s_cmp_ge_u32 s49, 16")
    e(f"s_cselect_b32 s{A}, s16, s{A}")
    e(f"s_cselect_b32 s{A+1}, s17, s{A+1}")
    e("s_cselect_b32 s50, 9216, s50")
    e("s_cselect_b32 s52, 16, s52")
    e("s_cmp_ge_u32 s49, 34")
    e(f"s_cselect_b32 s{A}, s18, s{A}")
    e(f"s_cselect_b32 s{A+1}, s19, s{A+1}")
    e("s_cselect_b32 s52, 34, s52")
    e("s_sub_u32 s51, s49, s52")
    e(f"s_mul_i32 s{A+2}, s50, 576")
    e(f"s_mov_b32 s{A+3}, 0x20000")
    e("s_mul_i32 s54, s48, 144")
    e(f"s_lshl_b32 s55, s{S_WAVE}, 4")
    e("s_add_u32 s53, s54, s55")
    e("s_mul_i32 s54, s53, s50")
    e("s_lshl_b32 s55, s51, 9")
    e("s_add_u32 s54, s54, s55")
    for i in range(1, 8):
        e(f"s_add_u32 s{54+i}, s{54+i-1}, s50")
    e("s_lshl_b32 s62, s50, 3")
    e("v_and_b32 v3, 31, v2")
    e("v_lshlrev_b32 v3, 4, v3")
    e("v_lshrrev_b32 v4, 5, v2")
    e("v_mul_lo_u32 v4, v4, s62")
    e("v_add_u32 v3, v3, v4")
    e("s_barrier")
    for i in range(8):
        e(f"buffer_load_dwordx4 v[{32+4*i}:{35+4*i}], v3, {ws(A)}, s{54+i} offen nt")
    e("v_lshrrev_b32 v7, 5, v2")
    e("v_lshlrev_b32 v7, 5, v7")
    e("s_lshl_b32 s63, s53, 2")
    e("v_add_u32 v7, s63, v7")
    e("v_and_b32 v80, 31, v2")
    e("v_lshlrev_b32 v80, 5, v80")
    e("v_lshrrev_b32 v81, 5, v2")
    e("v_lshlrev_b32 v81, 4, v81")
    e("v_add_u32 v80, v80, v81")
    e(f"s_lshl_b32 s63, s{S_WAVE}, 10")
    e(f"s_add_u32 s63, s63, {RED}")
    e("v_add_u32 v80, s63, v80")
    e(f"s_cmp_lg_u32 s{S_WAVE}, 0")
    e("s_cbranch_scc1 L_p1_b")
    e("s_waitcnt vmcnt(8)")
    emit_ln(e, list(range(8, 17)), list(range(17, 24)) + [72], 63, S_MASK, 6, XN)
    srd(e, SRD_M, 24, 256)
    nonce_fetch_issue(e, 84)
    e("s_waitcnt lgkmcnt(0)")
    e.label("L_p1_b")
    st()
    e("s_barrier")
    e(f"ds_read_b128 v[24:27], v7 offset:{XN}")
    e(f"ds_read_b128 v[28:31], v7 offset:{XN+16}")
    e(f"s_cmp_lg_u32 s{S_WAVE}, 0")
    e("s_cbranch_scc1 L_p1_c")
    e("s_waitcnt vmcnt(0)")
    e.label("L_p1_c")
    for i in range(8):
        if i == 0:
            e("s_waitcnt lgkmcnt(0)")
        e(f"s_waitcnt vmcnt({7-i})")
        for j in range(4):
            d = 32 + 4 * i + j
            ta, tb = 72 + 2 * (j % 2), 73 + 2 * (j % 2)
            e(f"v_lshlrev_b32 v{ta}, 16, v{d}")
            e(f"v_and_b32 v{tb}, s{S_MASK}, v{d}")
            if i == 0:
                e(f"v_mul_f32 v{64+2*j}, v{24+i}, v{ta}")
                e(f"v_mul_f32 v{65+2*j}, v{24+i}, v{tb}")
            else:
                e(f"v_fmac_f32 v{64+2*j}, v{24+i}, v{ta}")
                e(f"v_fmac_f32 v{65+2*j}, v{24+i}, v{tb}")
    st()
    kv_issue(e, "k1", "k")
    for j in range(4):
        e(f"v_permlane32_swap_b32 v{64+j}, v{68+j}")
    for j in range(4):
        e(f"v_add_f32 v{76+j}, v{64+j}, v{68+j}")
    e("ds_write_b128 v80, v[76:79]")
    e(f"s_cmp_lg_u32 s{S_WAVE}, 0")
    e("s_cbranch_scc1 L_p1_d")
    nonce_finish(e, 84, "a")
    e.label("L_p1_d")
    e("s_waitcnt lgkmcnt(0)")
    e("s_barrier")
    e(f"s_cmp_lg_u32 s{S_WAVE}, 0")
    e("s_cbranch_scc1 L_p1_e")
    e("v_lshlrev_b32 v1, 3, v2")
    for h in range(2):
        for s in range(9):
            e(f"ds_read_b64 v[{32+18*h+2*s}:{33+18*h+2*s}], v1 offset:{RED + 1024*s + 512*h}")
    e(f"s_mul_i32 s54, s48, {NG1}")
    e("s_lshl_b32 s55, s49, 7")
    e("s_add_u32 s54, s54, s55")
    e("s_lshl_b32 s54, s54, 4")
    if P1T:
        e(f"s_add_u32 s54, s54, {P1T}")
    e("v_lshlrev_b32 v1, 4, v2")
    set_tag(e, 76)
    set_tag(e, 80)
    for h in range(2):
        e(f"s_waitcnt lgkmcnt({9 - 9*h})")
        b = 32 + 18 * h
        e(f"v_pk_add_f32 v[{b}:{b+1}], v[{b}:{b+1}], v[{b+2}:{b+3}]")
        e(f"v_pk_add_f32 v[{b+4}:{b+5}], v[{b+4}:{b+5}], v[{b+6}:{b+7}]")
        e(f"v_pk_add_f32 v[{b+8}:{b+9}], v[{b+8}:{b+9}], v[{b+10}:{b+11}]")
        e(f"v_pk_add_f32 v[{b+12}:{b+13}], v[{b+12}:{b+13}], v[{b+14}:{b+15}]")
        e(f"v_pk_add_f32 v[{b}:{b+1}], v[{b}:{b+1}], v[{b+4}:{b+5}]")
        e(f"v_pk_add_f32 v[{b+8}:{b+9}], v[{b+8}:{b+9}], v[{b+12}:{b+13}]")
        e(f"v_pk_add_f32 v[{b}:{b+1}], v[{b}:{b+1}], v[{b+16}:{b+17}]")
        e(f"v_pk_add_f32 v[{76+4*h}:{77+4*h}], v[{b}:{b+1}], v[{b+8}:{b+9}]")
        e(f"buffer_store_dwordx4 v[{76+4*h}:{79+4*h}], v1, {ws()}, s54 offen offset:{1024*h} sc1")
    e("s_branch L_p1_e")
    e.label("L_p1_skip")
    kv_issue(e, "k2", "k")
    e(f"s_cmp_lg_u32 s{S_WAVE}, 0")
    e("s_cbranch_scc1 L_p1_skip_b")
    srd(e, SRD_M, 24, 256)
    nonce_fetch_issue(e, 84)
    nonce_finish(e, 84, "b")
    e("s_waitcnt lgkmcnt(0)")
    e.label("L_p1_skip_b")
    e("s_barrier")
    e.label("L_p1_e")
    nonce_read(e, 84)
    st()


def od_issue(e):
    e("v_lshlrev_b32 v3, 4, v0")
    srd(e, SRD_A, 12, 4718592)
    e(f"s_mov_b32 s{SRD_B}, s20")
    e(f"s_mov_b32 s{SRD_B+1}, s21")
    e("s_mul_i32 s56, s2, 20736")
    e(f"s_add_u32 s{SRD_B+2}, s56, 20736")
    e(f"s_mov_b32 s{SRD_B+3}, 0x20000")
    e("s_mul_i32 s57, s2, 18432")
    e("s_add_u32 s58, s57, 9216")
    e("s_add_u32 s59, s56, 9216")
    e("s_add_u32 s60, s56, 18432")
    for n, (srd_, so) in enumerate(((SRD_A, 57), (SRD_A, 58), (SRD_B, 56), (SRD_B, 59), (SRD_B, 60))):
        e(f"buffer_load_dwordx4 v[{96+4*n}:{99+4*n}], v3, {ws(srd_)}, s{so} offen nt")


def phase2(e, st):
    QL, OACC, ML = L_QL, L_OACC, L_ML
    kv_issue(e, "v1", "v")
    e("s_lshr_b32 s48, s2, 4")
    e("s_and_b32 s49, s2, 15")
    e(f"s_cmp_eq_u32 s{S_WAVE}, 0")
    e("s_cbranch_scc1 L_p2_helper")
    e(f"s_sub_u32 s50, s{S_WAVE}, 1")
    e("v_lshrrev_b32 v5, 4, v2")
    e("v_and_b32 v70, 7, v2")
    e("v_and_b32 v71, 1, v70")
    e("v_lshlrev_b32 v71, 4, v71")
    e("v_mov_b32 v72, 0xffff")
    e("v_lshlrev_b32 v72, v71, v72")
    e("v_lshrrev_b32 v70, 1, v70")
    for k in range(4):
        e(f"v_cmp_eq_u32 vcc, {k}, v70")
        e(f"v_cndmask_b32 v{8+k}, 0, v72, vcc")
    e("v_bfe_u32 v6, v2, 3, 1")
    e("v_lshlrev_b32 v6, 6, v6")
    e("v_lshlrev_b32 v70, 2, v5")
    e("v_add_u32 v6, v6, v70")
    e("v_bfe_u32 v73, v2, 2, 1")
    e("v_lshlrev_b32 v73, 8, v73")
    e("v_lshlrev_b32 v70, 4, v5")
    e("v_add_u32 v73, v73, v70")
    e("v_lshrrev_b32 v7, 5, v2")
    e("v_lshlrev_b32 v7, 9, v7")
    e("v_and_b32 v70, 15, v2")
    e("v_lshlrev_b32 v70, 5, v70")
    e("v_add_u32 v7, v7, v70")
    e("v_bfe_u32 v70, v2, 4, 1")
    e("v_lshlrev_b32 v71, 4, v70")
    e("v_add_u32 v7, v7, v71")
    e("s_lshl_b32 s52, s50, 10")
    e(f"s_add_u32 s52, s52, {OACC}")
    e("v_add_u32 v7, s52, v7")
    e("v_lshlrev_b32 v69, 3, v70")
    e("s_lshl_b32 s52, s50, 4")
    e(f"s_add_u32 s52, s52, {ML}")
    e("v_add_u32 v69, s52, v69")
    e("s_barrier")
    st()
    for i in range(4):
        e(f"ds_read_b128 v[{44+4*i}:{47+4*i}], v73 offset:{QL + 64*i}")
    od_issue(e)
    e("s_waitcnt vmcnt(9) lgkmcnt(0)")
    st()
    for i in range(4):
        c = "0" if i == 0 else "v[60:63]"
        e(f"v_mfma_f32_16x16x32_bf16 v[60:63], v[{44+4*i}:{47+4*i}], v[{12+4*i}:{15+4*i}], {c}")
    e("v_cvt_pk_bf16_f32 v70, v60, v60")
    e("v_lshlrev_b32 v70, 16, v70")
    e(f"v_mul_f32 v70, s{S_SCALE}, v70")
    rb(e, 70, 71)
    e("v_mov_b32 v74, v70")
    row_allreduce(e, "v_max_f32", 74)
    e("v_sub_f32 v70, v70, v74")
    e(f"v_mul_f32 v70, s{S_LOG2E}, v70")
    e("v_exp_f32 v70, v70")
    e("v_mov_b32 v75, v70")
    row_allreduce(e, "v_add_f32", 75)
    e("v_cvt_pk_bf16_f32 v71, v70, v70")
    e("v_lshlrev_b32 v72, 16, v71")
    e("v_sub_f32 v72, v70, v72")
    e("v_cvt_pk_bf16_f32 v72, v72, v72")
    e("ds_write_b64 v69, v[74:75]")
    for i in range(4):
        e(f"ds_bpermute_b32 v{76+i}, v6, v71 offset:{16*i}")
    for i in range(4):
        e(f"ds_bpermute_b32 v{88+i}, v6, v72 offset:{16*i}")
    for i in range(4):
        e(f"s_waitcnt vmcnt({8-i}) lgkmcnt({7-i})")
        for k in range(4):
            e(f"v_and_b32 v{80+k}, v{8+k}, v{76+i}")
        c = "0" if i == 0 else "v[64:67]"
        e(f"v_mfma_f32_16x16x32_bf16 v[64:67], v[80:83], v[{28+4*i}:{31+4*i}], {c}")
    for i in range(4):
        e(f"s_waitcnt lgkmcnt({3-i})")
        for k in range(4):
            e(f"v_and_b32 v{92+k}, v{8+k}, v{88+i}")
        e(f"v_mfma_f32_16x16x32_bf16 v[64:67], v[92:95], v[{28+4*i}:{31+4*i}], v[64:67]")
    e("ds_write_b128 v7, v[64:67]")
    e("s_waitcnt lgkmcnt(0)")
    st()
    e("s_barrier")
    e("s_branch L_p2_comb")
    e.label("L_p2_helper")
    e("v_lshlrev_b32 v3, 4, v2")
    e("s_lshl_b32 s50, s48, 11")
    if P1T:
        e(f"s_add_u32 s50, s50, {P1T}")
    e("s_mov_b32 s51, 0")
    e.label("L_p2_retry")
    for ks in range(4):
        e(f"s_add_u32 s{52+ks}, s50, {ks * NG1 * 16}")
        e(f"buffer_load_dwordx4 v[{12+8*ks}:{15+8*ks}], v3, {ws()}, s{52+ks} offen sc1")
        e(f"buffer_load_dwordx4 v[{16+8*ks}:{19+8*ks}], v3, {ws()}, s{52+ks} offen offset:1024 sc1")
    tagchk_init(e, 44)
    for n in range(8):
        e(f"s_waitcnt vmcnt({7-n})")
        tagchk(e, 44, 12 + 4 * n, 45, 46)
    spin_tail(e, 44, 51, "L_p2_retry", "L_p2_ok")
    e.label("L_p2_ok")
    for h in range(2):
        b = 12 + 4 * h
        e(f"v_pk_add_f32 v[{b}:{b+1}], v[{b}:{b+1}], v[{b+8}:{b+9}]")
        e(f"v_pk_add_f32 v[{b+16}:{b+17}], v[{b+16}:{b+17}], v[{b+24}:{b+25}]")
        e(f"v_pk_add_f32 v[{b}:{b+1}], v[{b}:{b+1}], v[{b+16}:{b+17}]")
        e(f"v_cvt_pk_bf16_f32 v{48+h}, v{b}, v{b+1}")
    e("v_lshlrev_b32 v4, 2, v2")
    e(f"ds_write_b32 v4, v48 offset:{QL}")
    e(f"ds_write_b32 v4, v49 offset:{QL+256}")
    e("s_waitcnt lgkmcnt(0)")
    e("s_barrier")
    od_issue(e)
    e("s_barrier")
    e.label("L_p2_comb")
    e(f"s_cmp_ge_u32 s{S_WAVE}, 2")
    e("s_cbranch_scc1 L_p2_end")
    e(f"s_lshl_b32 s50, s{S_WAVE}, 3")
    e(f"s_add_u32 s50, s50, {ML}")
    e("v_mov_b32 v3, s50")
    e("v_lshlrev_b32 v4, 3, v2")
    e(f"s_lshl_b32 s50, s{S_WAVE}, 9")
    e("v_add_u32 v4, s50, v4")
    for w in range(8):
        e(f"ds_read_b64 v[{12+2*w}:{13+2*w}], v3 offset:{16*w}")
    for w in range(8):
        e(f"ds_read_b64 v[{28+2*w}:{29+2*w}], v4 offset:{OACC + 1024*w}")
    e("s_lshl_b32 s51, s48, 1")
    e(f"s_add_u32 s51, s51, s{S_WAVE}")
    e("s_lshl_b32 s51, s51, 4")
    e("s_add_u32 s51, s51, s49")
    e("s_lshl_b32 s52, s51, 10")
    e(f"s_add_u32 s52, s52, {PACC}")
    e("s_lshl_b32 s53, s51, 7")
    e(f"s_add_u32 s53, s53, {PML}")
    e("s_waitcnt lgkmcnt(8)")
    e("v_max3_f32 v48, v12, v14, v16")
    e("v_max3_f32 v48, v48, v18, v20")
    e("v_max3_f32 v48, v48, v22, v24")
    e("v_max_f32 v48, v48, v26")
    for w in range(8):
        e(f"v_sub_f32 v{52+w}, v{12+2*w}, v48")
    for w in range(8):
        e(f"v_mul_f32 v{52+w}, s{S_LOG2E}, v{52+w}")
    for w in range(8):
        e(f"v_exp_f32 v{52+w}, v{52+w}")
    e("v_mul_f32 v49, v52, v13")
    for w in range(1, 8):
        e(f"v_fmac_f32 v49, v{52+w}, v{13+2*w}")
    set_tag(e, 48)
    e("s_waitcnt lgkmcnt(0)")
    e("v_mul_f32 v60, v52, v28")
    e("v_mul_f32 v61, v52, v29")
    for w in range(1, 8):
        e(f"v_fmac_f32 v60, v{52+w}, v{28+2*w}")
        e(f"v_fmac_f32 v61, v{52+w}, v{29+2*w}")
    set_tag(e, 60)
    e("v_lshlrev_b32 v6, 4, v2")
    e(f"buffer_store_dwordx4 v[60:63], v6, {ws()}, s52 offen sc1")
    e("s_mov_b64 s[54:55], exec")
    e("s_mov_b64 exec, 1")
    e(f"buffer_store_dwordx4 v[48:51], v6, {ws()}, s53 offen sc1")
    e("s_mov_b64 exec, s[54:55]")
    e.label("L_p2_end")
    st()


def phase3(e, st):
    e("v_mul_u32_u24 v4, 911, v0")
    e("v_lshrrev_b32 v4, 16, v4")
    e("v_mul_u32_u24 v5, 72, v4")
    e("v_sub_u32 v5, v0, v5")
    e(f"s_cmp_lg_u32 s{S_WAVE}, 0")
    e("s_cbranch_scc1 L_p3_a")
    e("s_lshr_b32 s53, s2, 3")
    e("s_and_b32 s54, s2, 7")
    e("v_and_b32 v6, 15, v2")
    e("v_lshrrev_b32 v7, 4, v2")
    e("v_lshlrev_b32 v8, 10, v6")
    e("v_lshl_add_u32 v8, v7, 4, v8")
    e("s_lshl_b32 s55, s53, 14")
    e("s_lshl_b32 s56, s54, 7")
    e("s_add_u32 s55, s55, s56")
    e(f"s_add_u32 s55, s55, {PACC}")
    e("v_lshlrev_b32 v9, 7, v6")
    e("s_lshl_b32 s56, s53, 11")
    e(f"s_add_u32 s56, s56, {PML}")
    e("v_min_u32 v10, 8, v2")
    e("v_lshlrev_b32 v11, 4, v10")
    e("s_mul_i32 s57, s2, 144")
    e("s_mov_b32 s58, 0")
    e.label("L_p3_retry")
    e(f"buffer_load_dwordx4 v[12:15], v9, {ws()}, s56 offen sc1")
    e(f"buffer_load_dwordx4 v[16:19], v8, {ws()}, s55 offen sc1")
    e(f"buffer_load_dwordx4 v[20:23], v8, {ws()}, s55 offen offset:64 sc1")
    for ks in range(4):
        e(f"s_add_u32 s59, s57, {P1T + (ks*NG1 + 2048)*16}")
        e(f"buffer_load_dwordx4 v[{32+8*ks}:{35+8*ks}], v11, {ws()}, s59 offen sc1")
        e(f"s_add_u32 s60, s57, {P1T + (ks*NG1 + 4352)*16}")
        e(f"buffer_load_dwordx4 v[{36+8*ks}:{39+8*ks}], v11, {ws()}, s60 offen sc1")
    tagchk_init(e, 24)
    quads = [12, 16, 20] + [32 + 4 * i for i in range(8)]
    for n, q in enumerate(quads):
        e(f"s_waitcnt vmcnt({10-n})")
        tagchk(e, 24, q, 25, 26)
    spin_tail(e, 24, 58, "L_p3_retry", "L_p3_ok")
    e.label("L_p3_ok")
    st()
    e("v_mov_b32 v14, v12")
    row_allreduce(e, "v_max_f32", 14)
    e("v_sub_f32 v12, v12, v14")
    e(f"v_mul_f32 v12, s{S_LOG2E}, v12")
    e("v_exp_f32 v12, v12")
    e("v_mul_f32 v13, v12, v13")
    row_allreduce(e, "v_add_f32", 13)
    e("v_rcp_f32 v14, v13")
    e("v_fma_f32 v15, -v13, v14, 1.0")
    e("v_fma_f32 v14, v15, v14, v14")
    e("v_mul_f32 v12, v12, v14")
    vals = [16, 17, 20, 21]
    for r in vals:
        e(f"v_mul_f32 v{r}, v12, v{r}")
    for sh in (8, 4, 2, 1):
        for r in vals:
            e(f"v_add_f32_dpp v{r}, v{r}, v{r} row_ror:{sh} row_mask:0xf bank_mask:0xf")
    rb2(e, 16, 17, 24, S_MASK)
    rb2(e, 20, 21, 24, S_MASK)
    e("v_lshlrev_b32 v7, 4, v7")
    e(f"ds_write_b32 v7, v16 offset:{L_XO}")
    e(f"ds_write_b32 v7, v17 offset:{L_XO+8}")
    e(f"ds_write_b32 v7, v20 offset:{L_XO+4}")
    e(f"ds_write_b32 v7, v21 offset:{L_XO+12}")
    e("v_pk_add_f32 v[32:33], v[32:33], v[40:41]")
    e("v_pk_add_f32 v[48:49], v[48:49], v[56:57]")
    e("v_pk_add_f32 v[32:33], v[32:33], v[48:49]")
    e("v_pk_add_f32 v[36:37], v[36:37], v[44:45]")
    e("v_pk_add_f32 v[52:53], v[52:53], v[60:61]")
    e("v_pk_add_f32 v[36:37], v[36:37], v[52:53]")
    rb2(e, 32, 33, 24, S_MASK)
    rb2(e, 36, 37, 24, S_MASK)
    e("s_mov_b32 s59, 0xc2fc0000")
    for r in (32, 33):
        e(f"v_mul_f32 v24, s{S_LOG2E}, v{r}")
        e("v_max_f32 v24, s59, v24")
        e("v_exp_f32 v24, -v24")
        e("v_add_f32 v24, 1.0, v24")
        e("v_rcp_f32 v25, v24")
        e("v_fma_f32 v26, -v24, v25, 1.0")
        e("v_fma_f32 v25, v26, v25, v25")
        e(f"v_mul_f32 v{r}, v{r}, v25")
    rb2(e, 32, 33, 24, S_MASK)
    e("v_mul_f32 v32, v32, v36")
    e("v_mul_f32 v33, v33, v37")
    rb2(e, 32, 33, 24, S_MASK)
    e("v_lshlrev_b32 v24, 1, v10")
    e("v_and_b32 v25, 7, v24")
    e("v_lshlrev_b32 v25, 4, v25")
    e("v_lshrrev_b32 v26, 3, v24")
    e("v_lshl_add_u32 v25, v26, 2, v25")
    e(f"ds_write_b32 v25, v32 offset:{L_XD}")
    e(f"ds_write_b32 v25, v33 offset:{L_XD+16}")
    e("v_subrev_u32 v24, 16, v2")
    e("v_lshlrev_b32 v24, 4, v24")
    e("v_mov_b32 v25, 0")
    e("v_cmp_gt_u32 vcc, 8, v24")
    e("v_subrev_u32 v26, 18, v2")
    e("v_cmp_gt_u32 vcc, 6, v26")
    e("s_and_saveexec_b64 s[60:61], vcc")
    e(f"ds_write_b32 v24, v25 offset:{L_XD+8}")
    e("s_mov_b64 exec, s[60:61]")
    e("s_waitcnt lgkmcnt(0)")
    e.label("L_p3_a")
    e("s_barrier")
    st()
    e("v_lshlrev_b32 v6, 3, v4")
    e(f"ds_read_b64 v[24:25], v6 offset:{L_XO}")
    e("v_lshlrev_b32 v6, 4, v4")
    e(f"ds_read_b96 v[28:30], v6 offset:{L_XD}")
    e("v_mul_u32_u24 v8, 2304, v4")
    e("v_lshl_add_u32 v8, v5, 5, v8")
    plan = [(24, 52, True), (25, 52, False), (28, 60, True), (29, 60, False), (30, 60, False)]
    for n, (xv, acc, first) in enumerate(plan):
        if n == 0:
            e("s_waitcnt vmcnt(0) lgkmcnt(0)")
        for j in range(4):
            d = 96 + 4 * n + j
            ta, tb = 68 + 2 * (j % 2), 69 + 2 * (j % 2)
            e(f"v_lshlrev_b32 v{ta}, 16, v{d}")
            e(f"v_and_b32 v{tb}, s{S_MASK}, v{d}")
            if first:
                e(f"v_mul_f32 v{acc+2*j}, v{xv}, v{ta}")
                e(f"v_mul_f32 v{acc+2*j+1}, v{xv}, v{tb}")
            else:
                e(f"v_fmac_f32 v{acc+2*j}, v{xv}, v{ta}")
                e(f"v_fmac_f32 v{acc+2*j+1}, v{xv}, v{tb}")
    e(f"ds_write_b128 v8, v[52:55] offset:{L_REDS}")
    e(f"ds_write_b128 v8, v[56:59] offset:{L_REDS+16}")
    e(f"ds_write_b128 v8, v[60:63] offset:{L_REDF}")
    e(f"ds_write_b128 v8, v[64:67] offset:{L_REDF+16}")
    e("s_waitcnt lgkmcnt(0)")
    st()
    e("s_barrier")
    e("v_lshlrev_b32 v9, 2, v0")
    for r in range(8):
        e(f"ds_read_b32 v{32+r}, v9 offset:{L_REDS + 2304*r}")
    for r in range(8):
        e(f"ds_read_b32 v{40+r}, v9 offset:{L_REDF + 2304*r}")
    e("v_lshlrev_b32 v10, 4, v0")
    e("s_mul_i32 s48, s2, 9216")
    e(f"s_add_u32 s48, s48, {PARTS}")
    e("s_waitcnt lgkmcnt(8)")
    e("v_add_f32 v32, v32, v33")
    e("v_add_f32 v34, v34, v35")
    e("v_add_f32 v36, v36, v37")
    e("v_add_f32 v38, v38, v39")
    e("v_add_f32 v32, v32, v34")
    e("v_add_f32 v36, v36, v38")
    e("v_add_f32 v48, v32, v36")
    e("s_waitcnt lgkmcnt(0)")
    e("v_add_f32 v40, v40, v41")
    e("v_add_f32 v42, v42, v43")
    e("v_add_f32 v44, v44, v45")
    e("v_add_f32 v46, v46, v47")
    e("v_add_f32 v40, v40, v42")
    e("v_add_f32 v44, v44, v46")
    e("v_add_f32 v49, v40, v44")
    set_tag(e, 48)
    e(f"buffer_store_dwordx4 v[48:51], v10, {ws()}, s48 offen sc1")
    st()


def phase4(e, st):
    e("s_cmp_ge_u32 s2, 144")
    e("s_cbranch_scc1 L_end")
    e(f"s_cmp_lg_u32 s{S_WAVE}, 0")
    e("s_cbranch_scc1 L_end")
    srd(e, SRD_A, 4, 1152)
    srd(e, SRD_B, 22, 1152)
    e("v_and_b32 v3, 3, v2")
    e("v_lshlrev_b32 v4, 1, v3")
    e("s_lshl_b32 s48, s2, 3")
    e(f"buffer_load_ushort v80, v4, {ws(SRD_A)}, s48 offen")
    e("v_lshrrev_b32 v5, 2, v2")
    e("v_mul_u32_u24 v5, 9216, v5")
    e("v_lshl_add_u32 v5, v3, 4, v5")
    e("s_lshl_b32 s49, s2, 6")
    e("s_mov_b32 s50, 0")
    for i in range(16):
        e(f"s_add_u32 s{51+i}, s49, {PARTS + i*16*9216}")
    e.label("L_p4_retry")
    for i in range(16):
        e(f"buffer_load_dwordx4 v[{8+4*i}:{11+4*i}], v5, {ws()}, s{51+i} offen sc1")
    tagchk_init(e, 72)
    for n in range(16):
        e(f"s_waitcnt vmcnt({15-n})")
        tagchk(e, 72, 8 + 4 * n, 73, 74)
    spin_tail(e, 72, 50, "L_p4_retry", "L_p4_ok")
    e.label("L_p4_ok")
    for step in (4, 8, 16, 32):
        for b in range(8, 72, 2 * step):
            e(f"v_pk_add_f32 v[{b}:{b+1}], v[{b}:{b+1}], v[{b+step}:{b+step+1}]")
    vals = [8, 9]
    for sh in (8, 4):
        for r in vals:
            e(f"v_add_f32_dpp v{r}, v{r}, v{r} row_ror:{sh} row_mask:0xf bank_mask:0xf")
    for swap in ("v_permlane16_swap_b32", "v_permlane32_swap_b32"):
        for k, r in enumerate(vals):
            e(f"v_mov_b32 v{12+k}, v{r}")
        for k, r in enumerate(vals):
            e(f"{swap} v{r}, v{12+k}")
        for k, r in enumerate(vals):
            e(f"v_add_f32 v{r}, v{r}, v{12+k}")
    rb2(e, 8, 9, 12, S_MASK)
    e("s_mov_b32 s51, 0xc2fc0000")
    e(f"v_mul_f32 v12, s{S_LOG2E}, v9")
    e("v_max_f32 v12, s51, v12")
    e("v_exp_f32 v12, -v12")
    e("v_add_f32 v12, 1.0, v12")
    e("v_rcp_f32 v13, v12")
    e("v_fma_f32 v14, -v12, v13, 1.0")
    e("v_fma_f32 v13, v14, v13, v13")
    e("v_mul_f32 v9, v9, v13")
    rb(e, 9, 12)
    e("v_mul_f32 v8, v8, v9")
    rb(e, 8, 12)
    e("v_lshlrev_b32 v12, 16, v80")
    e("v_add_f32 v8, v12, v8")
    e("v_cvt_pk_bf16_f32 v8, v8, v8")
    e("s_mov_b64 exec, 15")
    e(f"buffer_store_short v8, v4, {ws(SRD_B)}, s48 offen")
    e("s_mov_b64 exec, -1")


def build(stamps=False, prefetch=True):
    e = Emitter()
    st = St(e, stamps)
    e(kernel_head(NAME))
    e.label(NAME)
    e(f"s_cmp_ge_u32 s2, {NWG}")
    e("s_cbranch_scc1 L_exit")
    st()
    prologue(e, st, prefetch)
    phase1(e, st)
    phase2(e, st)
    phase3(e, st)
    phase4(e, st)
    e.label("L_end")
    st.flush(120, 48)
    e.label("L_exit")
    e("s_endpgm")
    e.label("L_code_end")
    e(kernel_desc(NAME, 128, 102))
    out = HEADER + f"; @launch grid=({NWG},1,1) block=(576,1,1) lds={LDS_BYTES}\n" + '.amdgcn_target "amdgcn-amd-amdhsa--gfx950"\n' + e.text()
    return out, st.n


if __name__ == "__main__":
    stamps = "--stamps" in sys.argv
    path = [a for a in sys.argv[1:] if not a.startswith("--")][0]
    txt, n = build(stamps, "--noprefetch" not in sys.argv)
    open(path, "w").write(txt)
    print("stamps:", n)
```
